```python
import torch

def _softmax(x, axis=-1):
    return torch.softmax(x, dim=axis)
def _gelu(x):
    return torch.nn.functional.gelu(x, approximate="tanh")
def _silu(x):
    return torch.nn.functional.silu(x)
def _sigmoid(x):
    return torch.sigmoid(x)
def _layernorm(x, axis=-1, eps=1e-5):
    m = x.mean(dim=axis, keepdim=True)
    v = x.var(dim=axis, keepdim=True, unbiased=False)
    return (x - m) / torch.sqrt(v + eps)
def _scatter_add(tgt, idx, src, axis=0):
    return tgt.clone().index_add_(axis, idx, src)
def _segment_sum(src, seg, n):
    out = torch.zeros((n,) + src.shape[1:], dtype=src.dtype)
    return out.index_add_(0, seg, src)
def _pad(x, pw):
    flat = tuple(v for pair in reversed(pw) for v in pair)
    return torch.nn.functional.pad(x, flat)

kernel_name = 'standalone__gqa_block_cached__near_ridge'

def setup_inputs():

    _w = (lambda a: (lambda t: t.to(torch.bfloat16) if t.is_floating_point() else t)(torch.as_tensor(a)))
    B, Sq, D = 8, 112, 448
    Hq, Hkv, Sk, Dh = 16, 8, 512, 256
    assert Hq % Hkv == 0, (Hq, Hkv)
    return {
        "x": _w((lambda *s: torch.randn(*s, dtype=torch.bfloat16) * 0.8)(B, Sq, D)),
        "k_cache": _w((lambda *s: torch.randn(*s, dtype=torch.bfloat16) * 0.8)(B, Hkv, Sk, Dh)),
        "v_cache": _w((lambda *s: torch.randn(*s, dtype=torch.bfloat16) * 0.05)(B, Hkv, Sk, Dh)),
        "wq": _w((lambda *s: torch.randn(*s, dtype=torch.bfloat16) * 0.8)(D, Hq * Dh) * (D ** -0.5)),
        "wo": _w((lambda *s: torch.randn(*s, dtype=torch.bfloat16) * 0.05)(Hq * Dh, D) * ((Hq * Dh) ** -0.5)),
    }

def reference(x, k_cache, v_cache, wq, wo):
    B, Sq, D = x.shape
    Hq, Dh = 16, 256
    Hkv = k_cache.shape[1]
    rep = Hq // Hkv
    q = (lambda x, *d: x.permute(*d))((x @ wq).reshape(B, Sq, Hq, Dh), 0, 2, 1, 3)
    k = (lambda x, n, axis: torch.repeat_interleave(x, n, dim=axis))(k_cache, rep, axis=1)
    v = (lambda x, n, axis: torch.repeat_interleave(x, n, dim=axis))(v_cache, rep, axis=1)
    scores = torch.einsum("bhqd,bhkd->bhqk", q, k) * (Dh ** -0.5)
    p = _softmax(scores, axis=-1)
    o = torch.einsum("bhqk,bhkd->bhqd", p, v)
    return (lambda x, *d: x.permute(*d))(o, 0, 2, 1, 3).reshape(B, Sq, Hq * Dh) @ wo
```

```python
import sys, math

NAME = "standalone__gqa_block_cached__near_ridge"
WS = 40960
XO, RO, MO, QO = 0, 16384, 30720, 32768
UNIT = {}
for i in range(8): UNIT[f"X{i}"] = XO + 2048*i
for i in range(7): UNIT[f"R{i}"] = RO + 2048*i
for i in range(4): UNIT[f"Q{i}"] = QO + 2048*i
WOSLOT = [RO, RO+7168, XO, XO+7168]

vLane=1
vDq=10; vDv=14; vDk=18; vDx=22; vDo=24
vTr=31; vKa=35; vXb=37; vLinX=41; vLinQ=43; vQw=45; vPw=46; vMw=47; vMr=48; vWo=49
vNm=56; vSum=60
FR=64
ACC=128
sX,sK,sV,sWQ,sWO,sWS = 16,20,24,28,32,36
sKVH,sB,sHH,sRH,sH,sW,sWB = 40,41,42,43,44,45,46
sRQ,sRD,sRK,sRO = 47,48,49,50
sOff=51; sT=52; sT2=53; sC=54; sKbase=55; sVcol=56; sQcol=57; sGam=58; sXrow=59
sKB=60
sQB=67
sST=76

class Em:
    def __init__(s):
        s.l=[]; s.vm=[]; s.lg=[]; s.vmdone=0; s.lgdone=0
    def I(s,x): s.l.append("  "+x)
    def C(s,x): s.l.append("  ; "+x)
    def vmi(s,x,tag): s.I(x); s.vm.append(tag)
    def lgi(s,x,tag): s.I(x); s.lg.append(tag)
    def _need(s,lst,done,tags,mx):
        idx=-1
        for t in tags:
            c=[i for i,u in enumerate(lst) if u==t]
            assert c, f"tag {t} never issued"
            idx=max(idx,c[-1])
        if idx<done: return None,done
        n=min(len(lst)-1-idx,mx)
        return n,len(lst)-n
    def wait(s,vm=(),lg=(),lgall=False,vmall=False):
        parts=[]
        if vmall:
            if s.vmdone<len(s.vm): parts.append("vmcnt(0)"); s.vmdone=len(s.vm)
        elif vm:
            n,d=s._need(s.vm,s.vmdone,vm,63)
            if n is not None: parts.append(f"vmcnt({n})"); s.vmdone=d
        if lgall:
            if s.lgdone<len(s.lg): parts.append("lgkmcnt(0)"); s.lgdone=len(s.lg)
        elif lg:
            n,d=s._need(s.lg,s.lgdone,lg,15)
            if n is not None: parts.append(f"lgkmcnt({n})"); s.lgdone=d
        if parts: s.I("s_waitcnt "+" ".join(parts))

class Stream:
    def __init__(s,e):
        s.e=e; s.q=[]; s.free=set(); s.loc={}; s.cur=None
    def add(s,tag,allowed,instrs,slot=None):
        s.q.append(dict(tag=tag,allowed=allowed,instrs=instrs,slot=slot,i=0))
    def release(s,*units):
        for u in units: s.free.add(u)
    def release_tag(s,tag):
        s.release(*s.loc[tag][1])
    def can(s):
        if not s.q: return False
        p=s.q[0]
        if p['i']>0: return True
        return any(all(u in s.free for u in opt[1]) for opt in p['allowed'])
    def issue(s):
        if not s.can(): return []
        p=s.q[0]
        if p['i']==0:
            for opt in p['allowed']:
                if all(u in s.free for u in opt[1]):
                    for u in opt[1]: s.free.discard(u)
                    s.loc[p['tag']]=opt; break
        base=s.loc[p['tag']][0]
        pre,m0add,txt=p['instrs'][p['i']]
        out=[('s',x,None) for x in pre]
        if m0add is not None:
            out.insert(0,('s',f"s_add_u32 m0, s{sWB}, {base+m0add}",None))
            if not pre: out.append(('s',"s_nop 0",None))
        out.append(('v',txt,p['tag']))
        p['i']+=1
        if p['i']==len(p['instrs']): s.q.pop(0)
        return out
    def emit(s,n=1):
        for _ in range(n):
            for k,t,tag in s.issue():
                if k=='s': s.e.I(t)
                else: s.e.vmi(t,tag)
    def off(s,tag): return s.loc[tag][0]

def U(*names): return [(UNIT[n],[n]) for n in names]
Rs=[f"R{i}" for i in range(7)]; Xs=[f"X{i}" for i in range(8)]; Qs=[f"Q{i}" for i in range(4)]

def mfma(d,a,b,first,ra='v',rb='v'):
    c="0" if first else f"v[{d}:{d+3}]"
    return f"v_mfma_f32_16x16x32_bf16 v[{d}:{d+3}], {ra}[{a}:{a+3}], {rb}[{b}:{b+3}], {c}"

def gen(stamps=0, rot="0,0,0,0", sc="", amp=""):
    e=Em(); I=e.I
    nst=[0]
    def stamp():
        if stamps:
            I(f"s_memrealtime s[{sST+2*nst[0]}:{sST+2*nst[0]+1}]"); I("s_waitcnt lgkmcnt(0)"); e.lgdone=len(e.lg); nst[0]+=1
    L=e.l
    L.append(f"; @launch kernel=gqa_main_kernel grid=(256,1,1) block=(256,1,1) lds=163840")
    L.append(f"; @launch kernel=gqa_red_kernel grid=(224,1,1) block=(256,1,1) lds=0")
    if amp: L.append("; @launch kernel=amp_kernel grid=(1,1,1) block=(64,1,1) lds=0")
    L.append('.amdgcn_target "amdgcn-amd-amdhsa--gfx950"')
    L.append(".text\n.globl gqa_main_kernel\n.p2align 8\n.type gqa_main_kernel,@function\ngqa_main_kernel:")
    I("s_cmp_ge_u32 s2, 256"); I("s_cbranch_scc1 L_main_end")
    stamp()
    I("s_load_dwordx4 s[4:7], s[0:1], 0"); I("s_load_dwordx4 s[8:11], s[0:1], 16")
    I("s_load_dwordx2 s[12:13], s[0:1], 32"); I("s_load_dwordx2 s[14:15], s[0:1], 56")
    I(f"v_lshrrev_b32 v2, 6, v0"); I(f"v_and_b32 v{vLane}, 63, v0"); I(f"v_readfirstlane_b32 s{sW}, v2")
    I(f"s_and_b32 s{sKVH}, s2, 7"); I(f"s_lshr_b32 s{sB}, s2, 5")
    I(f"s_bfe_u32 s{sHH}, s2, 0x10004"); I(f"s_bfe_u32 s{sRH}, s2, 0x10003")
    I(f"s_lshl_b32 s{sH}, s{sKVH}, 1"); I(f"s_add_u32 s{sH}, s{sH}, s{sHH}")
    I(f"s_mul_i32 s{sWB}, s{sW}, {WS}")
    def rotset(dst,spec,mod):
        if spec.isdigit(): I(f"s_mov_b32 s{dst}, {spec}")
        elif spec=="q":
            I(f"s_bfe_u32 s{dst}, s2, 0x20003")
        elif spec=="b":
            I(f"s_and_b32 s{dst}, s{sB}, 3")
        elif spec=="b7":
            I(f"s_cmp_eq_u32 s{sB}, 7"); I(f"s_cselect_b32 s{dst}, 3, s{sB}")
    r=rot.split(",")
    rotset(sRQ,r[0],7); rotset(sRD,r[1],4); rotset(sRK,r[2],4); rotset(sRO,r[3],4)
    e.C("lane decomposition for DMA: row8=lane>>3 (v2), p=lane&7 (v3)")
    I(f"v_lshrrev_b32 v2, 3, v{vLane}"); I(f"v_and_b32 v3, 7, v{vLane}")
    I("v_lshrrev_b32 v4, 1, v2")
    I("v_xor_b32 v5, v3, v4"); I("v_lshlrev_b32 v5, 4, v5")
    I("v_xor_b32 v6, 64, v5")
    I("v_lshlrev_b32 v7, 1, v4"); I("v_xor_b32 v7, v3, v7"); I("v_lshlrev_b32 v7, 4, v7")
    I("v_mul_u32_u24 v8, 896, v2")
    I(f"v_add_u32 v{vDx}, v8, v5")
    I(f"v_add_u32 v{vDx+1}, v8, v6"); I(f"v_add_u32 v{vDx+1}, {8*896-1024}, v{vDx+1}")
    I("v_lshrrev_b32 v8, 2, v2"); I("v_lshlrev_b32 v8, 3, v8"); I("v_and_b32 v9, 3, v2"); I("v_add_u32 v8, v8, v9")
    I("v_lshlrev_b32 v8, 13, v8"); I(f"v_add_u32 v{vDq}, v8, v7")
    for n in range(1,4):
        I(f"v_add_u32 v{vDq+n}, {((n&1)*16+(n>>1)*4)*8192-(n&1)*1024}, v{vDq}")
    e.C("scalar setup")
    I(f"s_mov_b32 s{sT}, s{sRQ}")
    I(f"s_add_u32 s{sQcol}, s{sW}, s{sRD}"); I(f"s_and_b32 s{sQcol}, s{sQcol}, 3"); I(f"s_lshl_b32 s{sQcol}, s{sQcol}, 7")
    I(f"s_mul_i32 s{sXrow}, s{sW}, {16*896}")
    for i in range(7):
        I(f"s_lshl_b32 s{sKB+i}, s{sT}, 7"); I(f"s_add_u32 s{sKB+i}, s{sKB+i}, s{sXrow}")
        I(f"s_lshl_b32 s{sQB+i}, s{sT}, 19"); I(f"s_add_u32 s{sQB+i}, s{sQB+i}, s{sQcol}")
        if i<6:
            I(f"s_add_u32 s{sT}, s{sT}, 1"); I(f"s_cmp_eq_u32 s{sT}, 7"); I(f"s_cselect_b32 s{sT}, 0, s{sT}")
    I("s_waitcnt lgkmcnt(0)")
    def srd(d,src,offreg,size):
        if offreg is None:
            I(f"s_mov_b32 s{d}, s{src}"); I(f"s_mov_b32 s{d+1}, s{src+1}")
        else:
            I(f"s_add_u32 s{d}, s{src}, s{offreg}"); I(f"s_addc_u32 s{d+1}, s{src+1}, 0")
        if size is not None: I(f"s_mov_b32 s{d+2}, {size}")
        I(f"s_mov_b32 s{d+3}, 0x20000")
    I(f"s_mul_i32 s{sT}, s{sB}, 112"); I(f"s_lshl_b32 s{sT2}, s{sRH}, 6"); I(f"s_add_u32 s{sT}, s{sT}, s{sT2}"); I(f"s_mul_i32 s{sT}, s{sT}, 896")
    srd(sX,4,sT,None)
    I(f"s_mul_i32 s{sT2}, s{sRH}, {16*896}"); I(f"s_sub_u32 s{sX+2}, {64*896}, s{sT2}")
    I(f"s_lshl_b32 s{sT}, s{sH}, 9")
    srd(sWQ,10,sT,None); I(f"s_sub_u32 s{sWQ+2}, {448*8192}, s{sT}")

    st=Stream(e)
    st.release(*Rs,*Xs,*Qs)
    xp=[];
    for i in range(7):
        xp.append((f"x{i}",U(f"X{i}"),[([],0,f"buffer_load_dwordx4 v{vDx}, s[{sX}:{sX+3}], s{sKB+i} offen lds"),
                                     ([],None,f"buffer_load_dwordx4 v{vDx+1}, s[{sX}:{sX+3}], s{sKB+i} offen offset:1024 lds")]))
    qp=[]
    for i in range(14):
        for hf in range(2):
            idx=2*i+hf
            al=U(*Qs,"X7") if idx>=23 else U(*Qs,"X7",*Rs)
            if i&1:
                pre=[f"s_add_u32 s{sOff}, s{sQB+(i>>1)}, {32*8192}"] if hf==0 else []
                so=sOff
            else: pre=[]; so=sQB+(i>>1)
            qp.append((f"q{i}{'AB'[hf]}",al,[(pre,0,f"buffer_load_dwordx4 v{vDq+2*hf}, s[{sWQ}:{sWQ+3}], s{so} offen lds"),
                                            ([],None,f"buffer_load_dwordx4 v{vDq+2*hf+1}, s[{sWQ}:{sWQ+3}], s{so} offen offset:1024 lds")]))
    order=[xp[0],qp[0],qp[1]]+xp[1:]+qp[2:]
    for p in order: st.add(*p)
    for ps in range(2):
        for i in range(4):
            for kt in range(4):
                idx=ps*16+i*4+kt
                al=U(*Xs) if idx>=24 else U(*Xs,*Rs)
                pre=[]
                if kt==0:
                    pre=[f"s_add_u32 s{sT}, s{sRD}, {i}", f"s_and_b32 s{sT}, s{sT}, 3", f"s_lshl_b32 s{sT}, s{sT}, 7", f"s_add_u32 s{sOff}, s{sT}, s{sKbase}"]
                    if ps: pre.append(f"s_add_u32 s{sOff}, s{sOff}, {64*512}")
                elif kt==2: pre=[f"s_add_u32 s{sOff}, s{sOff}, {32*512}"]
                j=2*(kt&1)
                st.add(f"k{ps}{i}{kt}",al,[(pre,0,f"buffer_load_dwordx4 v{vDk+j}, s[{sK}:{sK+3}], s{sOff} offen lds"),
                                           ([],None,f"buffer_load_dwordx4 v{vDk+j+1}, s[{sK}:{sK+3}], s{sOff} offen offset:1024 lds")])
    vl=Rs+Qs
    for i in range(16):
        for hf in range(2):
            idx=2*i+hf
            pre=[]
            if hf==0:
                if i==0: pre=[f"s_lshl_b32 s{sT2}, s{sRK}, 16", f"s_add_u32 s{sOff}, s{sT2}, s{sVcol}"]
                else: pre=[f"s_add_u32 s{sOff}, s{sOff}, {32*512}", f"s_and_b32 s{sOff}, s{sOff}, 0x3ffff"]
            st.add(f"v{i}{'AB'[hf]}",U(vl[(idx+1)%11]),[(pre,0,f"buffer_load_dwordx4 v{vDv+2*hf}, s[{sV}:{sV+3}], s{sOff} offen lds"),
                                                       ([],None,f"buffer_load_dwordx4 v{vDv+2*hf+1}, s[{sV}:{sV+3}], s{sOff} offen offset:1024 lds")])
    need=[["R0","R1","R2","R3"],["R4","R5","R6","R3h"],["X0","X1","X2","X3"],["X4","X5","X6","X7"]]
    for ks in range(8):
        pre=[f"s_add_u32 s{sT}, s{sRO}, {ks>>1}", f"s_and_b32 s{sT}, s{sT}, 3", f"s_mul_i32 s{sT}, s{sT}, {64*896}", f"s_add_u32 s{sOff}, s{sT}, s{sGam}"]
        if ks&1: pre=[f"s_add_u32 s{sOff}, s{sOff}, {32*896}"]
        ins=[]
        for i in range(7):
            ins.append((pre if i==0 else [], 0 if i==0 else (4096 if i==4 else None),
                        f"buffer_load_dwordx4 v{vDo+i}, s[{sWO}:{sWO+3}], s{sOff} offen"+(f" offset:{(i&3)*1024}" if i&3 else "")+" lds"))
        st.add(f"o{ks}",[(WOSLOT[ks&3],need[ks&3])],ins)

    st.emit(6)
    I(f"s_lshl_b32 s{sT}, s{sB}, 3"); I(f"s_add_u32 s{sT}, s{sT}, s{sKVH}"); I(f"s_lshl_b32 s{sT}, s{sT}, 18")
    srd(sK,6,sT,262144); srd(sV,8,sT,262144)
    I(f"s_mul_i32 s{sT}, s{sH}, 229376"); srd(sWO,12,sT,229376)
    srd(sWS,14,None,16*56*16*1024 if not stamps else 268435456)
    st.emit(12)
    I(f"s_add_u32 s{sKbase}, s{sW}, s{sRK}"); I(f"s_and_b32 s{sKbase}, s{sKbase}, 3"); I(f"s_lshl_b32 s{sKbase}, s{sKbase}, 16")
    I(f"s_add_u32 s{sVcol}, s{sW}, s{sRO}"); I(f"s_and_b32 s{sVcol}, s{sVcol}, 3"); I(f"s_lshl_b32 s{sVcol}, s{sVcol}, 7")
    I(f"s_and_b32 s{sGam}, s{sW}, 1"); I(f"s_lshl_b32 s{sGam}, s{sGam}, 1"); I(f"s_lshr_b32 s{sT}, s{sW}, 1"); I(f"s_add_u32 s{sGam}, s{sGam}, s{sT}"); I(f"s_mul_i32 s{sGam}, s{sGam}, {8*896}")
    I(f"s_mov_b32 s{sC}, 0x{np_f32_bits(math.log2(math.e)/16.0):08x}")
    st.emit(40)
    I("v_lshlrev_b32 v8, 9, v2")
    I(f"v_add_u32 v{vDv}, v8, v7")
    for n in range(1,4): I(f"v_add_u32 v{vDv+n}, {n*4096-(n&1)*1024}, v{vDv}")
    I(f"v_add_u32 v{vDk}, v8, v5"); I(f"v_add_u32 v{vDk+1}, v8, v6"); I(f"v_add_u32 v{vDk+1}, {4096-1024}, v{vDk+1}")
    I(f"v_add_u32 v{vDk+2}, 8192, v{vDk}"); I(f"v_add_u32 v{vDk+3}, 8192, v{vDk+1}")
    I(f"v_lshlrev_b32 v8, 4, v{vLane}")
    for i in range(7):
        f0=(i>>1)&3; f1=((i+1)>>1)&3; add=4096 if i>=4 else 0
        if f0==f1:
            I(f"v_xor_b32 v{vDo+i}, {(f0<<5)|add}, v8")
        else:
            I(f"v_cmp_gt_u32 vcc, {56-8*i}, v{vLane}")
            I(f"v_mov_b32 v9, {(f0<<5)|add}"); I(f"v_mov_b32 v{vDo+i}, {(f1<<5)|add}")
            I(f"v_cndmask_b32 v9, v{vDo+i}, v9, vcc"); I(f"v_xor_b32 v{vDo+i}, v9, v8")
    I(f"v_lshrrev_b32 v2, 4, v{vLane}"); I(f"v_and_b32 v3, 15, v{vLane}"); I(f"v_lshrrev_b32 v4, 2, v3"); I(f"v_and_b32 v5, 3, v{vLane}")
    I(f"v_lshrrev_b32 v6, 2, v{vLane}")
    I("v_lshrrev_b32 v7, 1, v6"); I("v_and_b32 v7, 3, v7"); I("v_lshlrev_b32 v7, 5, v7")
    I("v_lshlrev_b32 v8, 7, v6"); I("v_lshl_add_u32 v8, v5, 3, v8"); I(f"v_add_u32 v8, s{sWB}, v8")
    for t in range(4):
        I(f"v_xor_b32 v9, {t<<5}, v7"); I(f"v_add_u32 v{vTr+t}, v8, v9")
    I("v_and_b32 v8, 7, v6"); I("v_mul_u32_u24 v8, 896, v8"); I("v_lshl_add_u32 v8, v5, 3, v8")
    I("v_lshrrev_b32 v9, 1, v2"); I(f"v_mul_u32_u24 v9, {2*WS}, v9"); I("v_add_u32 v8, v8, v9")
    I(f"s_mul_i32 s{sT}, s{sW}, {7*32}")
    for nt in range(7):
        I(f"v_xor_b32 v9, s{sT}, v7"); I(f"v_add_u32 v{vWo+nt}, v8, v9")
        if nt<6: I(f"s_add_u32 s{sT}, s{sT}, 32")
    I("v_lshlrev_b32 v8, 7, v3")
    I("v_lshrrev_b32 v9, 1, v3"); I("v_xor_b32 v9, v2, v9"); I("v_lshl_add_u32 v8, v9, 4, v8")
    I("v_xor_b32 v9, 64, v8")
    I(f"v_add_u32 v{vKa}, s{sWB}, v8"); I(f"v_add_u32 v{vKa+1}, s{sWB}, v9")
    I(f"v_mov_b32 v{vXb}, v8"); I(f"v_add_u32 v{vXb+1}, {2*WS}, v8"); I(f"v_mov_b32 v{vXb+2}, v9"); I(f"v_add_u32 v{vXb+3}, {2*WS}, v9")
    I(f"v_lshlrev_b32 v{vLinX}, 4, v{vLane}"); I(f"v_add_u32 v{vLinX+1}, {2*WS}, v{vLinX}")
    I(f"v_add_u32 v{vLinQ}, {QO}, v{vLinX}"); I(f"v_add_u32 v{vLinQ+1}, {QO+2*WS}, v{vLinX}")
    I(f"v_add_u32 v{vPw}, s{sWB}, v{vLinX}")
    I("v_lshrrev_b32 v8, 1, v2"); I("v_lshl_add_u32 v8, v8, 4, v3"); I("v_lshlrev_b32 v8, 4, v8")
    I("v_and_b32 v9, 1, v2"); I("v_lshl_add_u32 v8, v9, 3, v8"); I(f"v_add_u32 v8, s{sWB}, v8"); I(f"v_add_u32 v{vQw}, {QO}, v8")
    I("v_lshlrev_b32 v9, 1, v9"); I("v_lshrrev_b32 v8, 1, v2"); I("v_add_u32 v8, v8, v9"); I("v_lshl_add_u32 v8, v8, 4, v3"); I("v_lshlrev_b32 v8, 4, v8")
    I(f"s_lshl_b32 s{sT}, s{sW}, 2"); I(f"s_add_u32 s{sT}, s{sT}, {MO}"); I(f"v_add_u32 v{vMw}, s{sT}, v8")
    I(f"v_lshlrev_b32 v{vMr}, 4, v3"); I(f"v_add_u32 v{vMr}, {MO}, v{vMr}")

    def barrier(): I("s_barrier")

    def run_step(mf, reads, dmagaps, rgaps=None):
        n=len(mf)
        if rgaps is None: rgaps=list(range(len(reads)))
        for gi,m in enumerate(mf):
            I(m)
            for ri,rg in enumerate(rgaps):
                if rg==gi: e.lgi(*reads[ri])
            for _ in range(dmagaps.count(gi)): st.emit(1)

    def tr_reads(tagA,tagB,base,rt):
        out=[]
        for t in range(4):
            out.append((f"ds_read_b64_tr_b16 v[{base+4*t}:{base+4*t+1}], v{vTr+t} offset:{st.off(tagA)}",rt))
            out.append((f"ds_read_b64_tr_b16 v[{base+4*t+2}:{base+4*t+3}], v{vTr+t} offset:{st.off(tagB)}",rt))
        return out
    def order_reads(a,b):
        k=len(a)//4
        return a[:k]+b+a[k:]
    DG=[1,5,9,13]
    RG=[0,2,3,4,6,7,8,10,11,12,14,15]
    RG=[0,0,2,3,4,6,7,8,10,11,12,12]

    e.C("==== P1")
    e.wait(vm=[f"x{i}" for i in range(7)]+["q0A","q0B"]); barrier()
    stamp()
    def p1_reads(i):
        base=FR+32*(i&1)
        a=tr_reads(f"q{i}A",f"q{i}B",base,f"f1_{i}")
        b=[(f"ds_read_b128 v[{base+16+4*qt}:{base+19+4*qt}], v{vXb+2*(i&1)+(qt>>1)} offset:{(qt&1)*WS+(i>>1)*2048}",f"f1_{i}") for qt in range(4)]
        return order_reads(a,b)
    for x in p1_reads(0): e.lgi(*x)
    for i in range(14):
        base=FR+32*(i&1)
        nxt=[f"q{i+1}A",f"q{i+1}B"] if i<13 else []
        e.wait(vm=nxt,lg=[f"f1_{i}"])
        st.release_tag(f"q{i}A"); st.release_tag(f"q{i}B")
        mf=[mfma(ACC+4*(4*t+qt),base+4*t,base+16+4*qt,i==0) for t in range(4) for qt in range(4)]
        run_step(mf,p1_reads(i+1) if i<13 else [],DG,RG if i<13 else [])
    for u in Qs: assert u in st.free, u
    for u in Qs: st.free.discard(u)
    I("s_nop 7")
    for t in range(4):
        for qt in range(4):
            d=ACC+4*(4*t+qt); tmp=FR+2*((4*t+qt)%8)
            I(f"v_cvt_pk_bf16_f32 v{tmp}, v{d}, v{d+1}"); I(f"v_cvt_pk_bf16_f32 v{tmp+1}, v{d+2}, v{d+3}")
            e.lgi(f"ds_write_b64 v{vQw}, v[{tmp}:{tmp+1}] offset:{((t>>1)*4+qt)*1024+(t&1)*512}","qw")
    e.wait(lgall=True); barrier()
    stamp()
    st.release(*[f"X{i}" for i in range(7)])
    st.emit(8)
    e.C("==== P2")
    def p2_reads(s):
        ps,i,par=s>>3,(s>>1)&3,s&1
        base=FR+32*(s&1)
        a=[(f"ds_read_b128 v[{base+4*kt}:{base+4*kt+3}], v{vKa+par} offset:{st.off(f'k{ps}{i}{kt}')}",f"f2_{s}") for kt in range(4)]
        b=[]
        if ps==0:
            for qt in range(4):
                ar=16*s+4*qt
                b.append((f"ds_read_b128 a[{ar}:{ar+3}], v{vLinQ+(i>>1)} offset:{(i&1)*WS+(par*4+qt)*1024}",f"f2_{s}"))
        return order_reads(a,b)
    def ktags(s): return [f"k{s>>3}{(s>>1)&3}{kt}" for kt in range(4)]
    e.wait(vm=ktags(0))
    for x in p2_reads(0): e.lgi(*x)
    for s in range(16):
        base=FR+32*(s&1); ps=s>>3
        e.wait(vm=ktags(s+1) if s<15 else [],lg=[f"f2_{s}"])
        if s&1:
            for t in ktags(s): st.release_tag(t)
        mf=[mfma(ACC+64*ps+4*(4*kt+qt),base+4*kt,16*(s&7)+4*qt,(s&7)==0,rb='a') for kt in range(4) for qt in range(4)]
        rd=p2_reads(s+1) if s<15 else []
        run_step(mf,rd,DG,RG[1:1+len(rd)])
    for u in Xs: assert u in st.free, u
    for u in Xs: st.free.discard(u)
    stamp()
    e.C("==== softmax")
    def S(ps,kt,qt,r): return ACC+64*ps+4*(4*kt+qt)+r
    I("s_nop 7")
    for qt in range(4):
        vals=[S(ps,kt,qt,r) for ps in range(2) for kt in range(4) for r in range(4)]
        I(f"v_max_f32 v{vNm+qt}, v{vals[0]}, v{vals[1]}")
    for k in range(1,16):
        for qt in range(4):
            vals=[S(ps,kt,qt,r) for ps in range(2) for kt in range(4) for r in range(4)]
            I(f"v_max3_f32 v{vNm+qt}, v{vals[2*k]}, v{vals[2*k+1]}, v{vNm+qt}")
    def xreduce(b,op):
        I("s_nop 1")
        I(f"v_permlane32_swap_b32 v{b}, v{b+1}"); I(f"v_permlane32_swap_b32 v{b+2}, v{b+3}")
        I("s_nop 1")
        I(f"{op} v{b}, v{b}, v{b+1}"); I(f"{op} v{b+2}, v{b+2}, v{b+3}")
        I("s_nop 1")
        I(f"v_permlane16_swap_b32 v{b}, v{b+2}")
        I("s_nop 1")
        I(f"{op} v{b}, v{b}, v{b+2}")
    xreduce(vNm,"v_max_f32")
    e.lgi(f"ds_write_b32 v{vMw}, v{vNm}","mw")
    e.wait(lgall=True); barrier()
    st.release(*Qs)
    for qt in range(4): e.lgi(f"ds_read_b128 v[{FR+4*qt}:{FR+4*qt+3}], v{vMr} offset:{qt*256}","mr")
    st.emit(8)
    e.wait(lgall=True)
    for qt in range(4):
        b=FR+4*qt
        I(f"v_max3_f32 v{b}, v{b}, v{b+1}, v{b+2}")
    for qt in range(4):
        b=FR+4*qt
        I(f"v_max_f32 v{b}, v{b}, v{b+3}")
    for qt in range(4):
        I(f"v_mul_f32 v{vNm+qt}, s{sC}, v{FR+4*qt}")
    for m in range(4):
        ps,kp=m>>1,m&1
        for qt in range(4):
            vals=[S(ps,2*kp+kk,qt,r) for kk in range(2) for r in range(4)]
            for v in vals: I(f"v_fma_f32 v{v}, v{v}, s{sC}, -v{vNm+qt}")
            for v in vals: I(f"v_exp_f32 v{v}, v{v}")
            tmp=FR+4*((4*m+qt)%8)
            for j in range(4): I(f"v_cvt_pk_bf16_f32 v{tmp+j}, v{vals[2*j]}, v{vals[2*j+1]}")
            e.lgi(f"ds_write_b128 v{vPw}, v[{tmp}:{tmp+3}] offset:{XO+(m*4+qt)*1024}","pw")
            I(f"v_add_f32 v{vals[0]}, v{vals[0]}, v{vals[1]}"); I(f"v_add_f32 v{vals[2]}, v{vals[2]}, v{vals[3]}")
            I(f"v_add_f32 v{vals[4]}, v{vals[4]}, v{vals[5]}"); I(f"v_add_f32 v{vals[6]}, v{vals[6]}, v{vals[7]}")
            I(f"v_add_f32 v{vals[0]}, v{vals[0]}, v{vals[2]}"); I(f"v_add_f32 v{vals[4]}, v{vals[4]}, v{vals[6]}")
            if m==0: I(f"v_add_f32 v{vSum+qt}, v{vals[0]}, v{vals[4]}")
            else: I(f"v_add3_f32_placeholder")  if False else (I(f"v_add_f32 v{vals[0]}, v{vals[0]}, v{vals[4]}"), I(f"v_add_f32 v{vSum+qt}, v{vSum+qt}, v{vals[0]}"))
            st.emit(1)
    xreduce(vSum,"v_add_f32")
    e.lgi(f"ds_write_b32 v{vMw}, v{vSum} offset:1024","sw")
    e.wait(lgall=True); barrier()
    stamp()
    e.C("==== P3")
    def p3_reads(i):
        base=FR+32*(i&1); rg=i>>2
        a=tr_reads(f"v{i}A",f"v{i}B",base,f"f3_{i}")
        b=[(f"ds_read_b128 v[{base+16+4*qt}:{base+19+4*qt}], v{vLinX+(rg>>1)} offset:{(rg&1)*WS+((i&3)*4+qt)*1024}",f"f3_{i}") for qt in range(4)]
        return order_reads(a,b)
    e.wait(vm=["v0A","v0B"])
    for x in p3_reads(0): e.lgi(*x)
    for i in range(16):
        base=FR+32*(i&1)
        e.wait(vm=[f"v{i+1}A",f"v{i+1}B"] if i<15 else [],lg=[f"f3_{i}"])
        st.release_tag(f"v{i}A"); st.release_tag(f"v{i}B")
        if "o0" in st.loc and "R3h" not in st.free and "o1" not in st.loc: st.release("R3h")
        mf=[mfma(ACC+4*(4*t+qt),base+4*t,base+16+4*qt,i==0) for t in range(4) for qt in range(4)]
        if i<15: run_step(mf,p3_reads(i+1),DG,RG)
        else:
            rd=[(f"ds_read_b128 v[{FR+4*qt}:{FR+4*qt+3}], v{vMr} offset:{1024+qt*256}","sr") for qt in range(4)]
            run_step(mf,rd,DG,[0,2,3,4])
    for u in Qs: assert u in st.free, u
    for u in Qs: st.free.discard(u)
    if "R3h" not in st.free and "o1" not in st.loc: st.release("R3h")
    stamp()
    e.wait(lg=["sr"])
    for qt in range(4):
        b=FR+4*qt
        I(f"v_add_f32 v{b}, v{b}, v{b+1}"); I(f"v_add_f32 v{b+2}, v{b+2}, v{b+3}")
    for qt in range(4):
        b=FR+4*qt
        I(f"v_add_f32 v{b}, v{b}, v{b+2}")
    for qt in range(4): I(f"v_rcp_f32 v{vSum+qt}, v{FR+4*qt}")
    I("s_nop 0")
    for m in range(2):
        for qt in range(4):
            vals=[ACC+4*(4*(2*m+kk)+qt)+r for kk in range(2) for r in range(4)]
            for v in vals: I(f"v_mul_f32 v{v}, v{v}, v{vSum+qt}")
            tmp=FR+32+4*((4*m+qt)%8)
            for j in range(4): I(f"v_cvt_pk_bf16_f32 v{tmp+j}, v{vals[2*j]}, v{vals[2*j+1]}")
            e.lgi(f"ds_write_b128 v{vPw}, v[{tmp}:{tmp+3}] offset:{QO+(m*4+qt)*1024}","ow")
            st.emit(1)
    while "o1" not in st.loc or (st.q and st.q[0]['tag'] in ("o0","o1")): st.emit(1)
    e.wait(vm=["o0"],lgall=True); barrier()
    st.release(*Xs)
    stamp()
    e.C("==== P4")
    def p4_reads(ks):
        base=FR+28*(ks&1); rg=ks>>1; so=st.off(f"o{ks}")
        a=[]
        for nt in range(7):
            a.append((f"ds_read_b64_tr_b16 v[{base+4*nt}:{base+4*nt+1}], v{vWo+nt} offset:{so}",f"f4_{ks}"))
            a.append((f"ds_read_b64_tr_b16 v[{base+4*nt+2}:{base+4*nt+3}], v{vWo+nt} offset:{so+WS}",f"f4_{ks}"))
        b=[(f"ds_read_b128 a[{16*ks+4*qt}:{16*ks+4*qt+3}], v{vLinQ+(rg>>1)} offset:{(rg&1)*WS+((ks&1)*4+qt)*1024}",f"f4_{ks}") for qt in range(4)]
        return a[:2]+b+a[2:]
    for x in p4_reads(0): e.lgi(*x)
    st.emit(14)
    for ks in range(8):
        base=FR+28*(ks&1)
        e.wait(vm=[f"o{ks+1}"] if ks<7 else [],lg=[f"f4_{ks}"])
        if ks<7: barrier()
        st.release_tag(f"o{ks}")
        mf=[mfma(ACC+4*(4*nt+qt),base+4*nt,16*ks+4*qt,ks==0,rb='a') for nt in range(7) for qt in range(4)]
        rd=p4_reads(ks+1) if ks<7 else []
        dg=[1,5,9,13,17,21,25]
        rgs=[g for g in range(28) if g not in dg][:len(rd)]
        run_step(mf,rd,dg,rgs)
    assert not st.q
    stamp()
    I(f"s_lshl_b32 s{sT}, s{sB}, 1"); I(f"s_add_u32 s{sT}, s{sT}, s{sRH}"); I(f"s_mul_i32 s{sT}, s{sT}, 56")
    I(f"s_mul_i32 s{sT2}, s{sW}, 14"); I(f"s_add_u32 s{sT}, s{sT}, s{sT2}"); I(f"s_lshl_b32 s{sT}, s{sT}, 4"); I(f"s_add_u32 s{sT}, s{sT}, s{sH}"); I(f"s_lshl_b32 s{sOff}, s{sT}, 10")
    I("s_nop 3")
    for nt in range(7):
        for pr in range(2):
            d=ACC+4*(4*nt+2*pr); tmp=FR+4*((2*nt+pr)%14)
            for j in range(4): I(f"v_cvt_pk_bf16_f32 v{tmp+j}, v{d+2*j}, v{d+2*j+1}")
            e.vmi(f"buffer_store_dwordx4 v[{tmp}:{tmp+3}], v{vLinX}, s[{sWS}:{sWS+3}], s{sOff} offen{sc}","st")
            I(f"s_add_u32 s{sOff}, s{sOff}, 16384")
    if stamps:
        e.wait(vmall=True); stamp()
        I(f"s_lshl_b32 s{sT}, s2, 2"); I(f"s_add_u32 s{sT}, s{sT}, s{sW}"); I(f"s_lshl_b32 s{sT}, s{sT}, 6"); I(f"s_add_u32 s{sT}, s{sT}, 0x4000000")
        I("v_mov_b32 v2, 0")
        for i in range(nst[0]):
            I(f"v_mov_b32 v3, s{sST+2*i}"); I(f"buffer_store_dword v3, v2, s[{sWS}:{sWS+3}], s{sT} offen offset:{4*i}"); I("s_nop 1")
    L.append("L_main_end:"); I("s_endpgm")

    L.append(".globl gqa_red_kernel\n.p2align 8\n.type gqa_red_kernel,@function\ngqa_red_kernel:")
    I("s_cmp_ge_u32 s2, 224"); I("s_cbranch_scc1 L_red_end")
    I("s_load_dwordx2 s[4:5], s[0:1], 40"); I("s_load_dwordx2 s[6:7], s[0:1], 56")
    I("v_lshrrev_b32 v2, 6, v0"); I("v_and_b32 v1, 63, v0"); I("v_readfirstlane_b32 s8, v2")
    I("s_lshl_b32 s9, s2, 2"); I("s_add_u32 s9, s9, s8")
    I("s_lshl_b32 s10, s9, 14")
    I("v_lshlrev_b32 v3, 4, v1")
    I("s_waitcnt lgkmcnt(0)")
    I("s_mov_b32 s16, s6"); I("s_mov_b32 s17, s7"); I(f"s_mov_b32 s18, {16*56*16*1024}"); I("s_mov_b32 s19, 0x20000")
    I("s_mov_b32 s20, s4"); I("s_mov_b32 s21, s5"); I(f"s_mov_b32 s22, {8*112*448*2}"); I("s_mov_b32 s23, 0x20000")
    for h in range(16):
        I(f"buffer_load_dwordx4 v[{16+4*h}:{19+4*h}], v3, s[16:19], s10 offen"+(f" offset:{(h&3)*1024}" if h&3 else ""))
        if (h&3)==3 and h<15: I("s_add_u32 s10, s10, 4096")
    I(f"s_mul_i32 s11, s9, {math.ceil(65536/56)}"); I("s_lshr_b32 s11, s11, 16")
    I("s_mul_i32 s12, s11, 56"); I("s_sub_u32 s12, s9, s12")
    I(f"s_mul_i32 s13, s12, {math.ceil(65536/14)}"); I("s_lshr_b32 s13, s13, 16")
    I("s_mul_i32 s14, s13, 14"); I("s_sub_u32 s14, s12, s14")
    I("s_lshr_b32 s15, s14, 1"); I("s_and_b32 s14, s14, 1")
    I("s_lshr_b32 s24, s11, 1"); I("s_and_b32 s25, s11, 1")
    I("s_mul_i32 s26, s24, 112"); I("s_lshl_b32 s27, s25, 6"); I("s_add_u32 s26, s26, s27"); I("s_lshl_b32 s27, s14, 5"); I("s_add_u32 s26, s26, s27")
    I("s_mul_i32 s26, s26, 896")
    I("s_mul_i32 s27, s13, 224"); I("s_add_u32 s26, s26, s27"); I("s_lshl_b32 s27, s15, 5"); I("s_add_u32 s26, s26, s27")
    I("v_and_b32 v4, 15, v1"); I("v_mul_u32_u24 v4, 896, v4"); I("v_lshrrev_b32 v5, 4, v1"); I("v_lshl_add_u32 v4, v5, 3, v4")
    I("s_mov_b32 s28, 0xffff0000")
    for h in range(16):
        I(f"s_waitcnt vmcnt({15-h})")
        for j in range(4):
            r=16+4*h+j
            if h==0:
                I(f"v_lshlrev_b32 v{8+2*j}, 16, v{r}"); I(f"v_and_b32 v{9+2*j}, s28, v{r}")
            else:
                I(f"v_lshlrev_b32 v6, 16, v{r}"); I(f"v_and_b32 v7, s28, v{r}")
                I(f"v_add_f32 v{8+2*j}, v{8+2*j}, v6"); I(f"v_add_f32 v{9+2*j}, v{9+2*j}, v7")
    for j in range(4): I(f"v_cvt_pk_bf16_f32 v{16+j}, v{8+2*j}, v{9+2*j}")
    I("buffer_store_dwordx2 v[16:17], v4, s[20:23], s26 offen")
    I("s_and_b32 s27, s25, s14"); I("s_cmp_lg_u32 s27, 0"); I("s_cbranch_scc1 L_red_end")
    I(f"s_add_u32 s26, s26, {16*896}")
    I("buffer_store_dwordx2 v[18:19], v4, s[20:23], s26 offen")
    L.append("L_red_end:"); I("s_endpgm")
    kl=[("gqa_main_kernel",384,256),("gqa_red_kernel",80,80)]
    if amp:
        a0,a1=[int(x) for x in str(amp).split("_")]
        kl.append(("amp_kernel",8,8))
        L.append(".globl amp_kernel\n.p2align 8\n.type amp_kernel,@function\namp_kernel:")
        I("s_cmp_ge_u32 s2, 1"); I("s_cbranch_scc1 L_amp_end")
        I("s_load_dwordx2 s[6:7], s[0:1], 56"); I("s_waitcnt lgkmcnt(0)")
        I(f"s_add_u32 s6, s6, {0x4000000+100*4*64}"); I("s_addc_u32 s7, s7, 0")
        I(f"s_load_dword s8, s[6:7], {4*a0}"); I(f"s_load_dword s9, s[6:7], {4*a1}"); I("s_memrealtime s[10:11]"); I("s_waitcnt lgkmcnt(0)")
        I("s_sub_u32 s8, s9, s8"); I("s_min_u32 s8, s8, 10000"); I("s_mul_i32 s8, s8, 10")
        L.append("L_amp_loop:")
        I("s_memrealtime s[12:13]"); I("s_waitcnt lgkmcnt(0)"); I("s_sub_u32 s14, s12, s10"); I("s_cmp_lt_u32 s14, s8"); I("s_cbranch_scc1 L_amp_loop")
        L.append("L_amp_end:"); I("s_endpgm")
    L.append('.section .rodata,"a"')
    for nm,nv,ao in kl:
        L.append(f".p2align 6\n.amdhsa_kernel {nm}\n  .amdhsa_next_free_vgpr {nv}\n  .amdhsa_next_free_sgpr 102\n  .amdhsa_accum_offset {ao}\n  .amdhsa_group_segment_fixed_size 0\n  .amdhsa_kernarg_size 64\n  .amdhsa_user_sgpr_count 2\n  .amdhsa_user_sgpr_kernarg_segment_ptr 1\n  .amdhsa_system_sgpr_workgroup_id_x 1\n.end_amdhsa_kernel")
    return "\n".join(L)+"\n"

def np_f32_bits(x):
    import struct
    return struct.unpack("<I",struct.pack("<f",x))[0]

if __name__=="__main__":
    kw={}
    for a in sys.argv[2:]:
        k,v=a.split("=")
        try: v=int(v) if "_" not in v else v
        except: pass
        kw[k]=v
    if "sc" in kw: kw["sc"]=" "+kw["sc"].replace("_"," ")
    open(sys.argv[1],"w").write(gen(**kw))
```

```python
import sys, math

NAME = "standalone__gqa_block_cached__near_ridge"
WS = 40960
XO, RO, MO, QO = 0, 16384, 30720, 32768
UNIT = {}
for i in range(8): UNIT[f"X{i}"] = XO + 2048*i
for i in range(7): UNIT[f"R{i}"] = RO + 2048*i
for i in range(4): UNIT[f"Q{i}"] = QO + 2048*i
WOSLOT = [RO, RO+7168, XO, XO+7168]

vLane=1
vDq=10; vDv=14; vDk=18; vDx=22; vDo=24
vTr=31; vKa=35; vXb=37; vLinX=41; vLinQ=43; vQw=45; vPw=46; vMw=47; vMr=48; vWo=49
vNm=56; vSum=60
FR=64
ACC=128
sX,sK,sV,sWQ,sWO,sWS = 16,20,24,28,32,36
sKVH,sB,sHH,sRH,sH,sW,sWB = 40,41,42,43,44,45,46
sRQ,sRD,sRK,sRO = 47,48,49,50
sOff=51; sT=52; sT2=53; sC=54; sKbase=55; sVcol=56; sQcol=57; sGam=58; sXrow=59
sKB=60
sQB=67
sST=76

class Em:
    def __init__(s):
        s.l=[]; s.vm=[]; s.lg=[]; s.vmdone=0; s.lgdone=0
    def I(s,x): s.l.append("  "+x)
    def C(s,x): s.l.append("  ; "+x)
    def vmi(s,x,tag): s.I(x); s.vm.append(tag)
    def lgi(s,x,tag): s.I(x); s.lg.append(tag)
    def _need(s,lst,done,tags,mx):
        idx=-1
        for t in tags:
            c=[i for i,u in enumerate(lst) if u==t]
            assert c, f"tag {t} never issued"
            idx=max(idx,c[-1])
        if idx<done: return None,done
        n=min(len(lst)-1-idx,mx)
        return n,len(lst)-n
    def wait(s,vm=(),lg=(),lgall=False,vmall=False):
        parts=[]
        if vmall:
            if s.vmdone<len(s.vm): parts.append("vmcnt(0)"); s.vmdone=len(s.vm)
        elif vm:
            n,d=s._need(s.vm,s.vmdone,vm,63)
            if n is not None: parts.append(f"vmcnt({n})"); s.vmdone=d
        if lgall:
            if s.lgdone<len(s.lg): parts.append("lgkmcnt(0)"); s.lgdone=len(s.lg)
        elif lg:
            n,d=s._need(s.lg,s.lgdone,lg,15)
            if n is not None: parts.append(f"lgkmcnt({n})"); s.lgdone=d
        if parts: s.I("s_waitcnt "+" ".join(parts))

class Stream:
    def __init__(s,e):
        s.e=e; s.q=[]; s.free=set(); s.loc={}; s.cur=None
    def add(s,tag,allowed,instrs,slot=None):
        s.q.append(dict(tag=tag,allowed=allowed,instrs=instrs,slot=slot,i=0))
    def release(s,*units):
        for u in units: s.free.add(u)
    def release_tag(s,tag):
        s.release(*s.loc[tag][1])
    def can(s):
        if not s.q: return False
        p=s.q[0]
        if p['i']>0: return True
        return any(all(u in s.free for u in opt[1]) for opt in p['allowed'])
    def issue(s):
        if not s.can(): return []
        p=s.q[0]
        if p['i']==0:
            for opt in p['allowed']:
                if all(u in s.free for u in opt[1]):
                    for u in opt[1]: s.free.discard(u)
                    s.loc[p['tag']]=opt; break
        base=s.loc[p['tag']][0]
        pre,m0add,txt=p['instrs'][p['i']]
        out=[('s',x,None) for x in pre]
        if m0add is not None:
            out.insert(0,('s',f"s_add_u32 m0, s{sWB}, {base+m0add}",None))
            if not pre: out.append(('s',"s_nop 0",None))
        out.append(('v',txt,p['tag']))
        p['i']+=1
        if p['i']==len(p['instrs']): s.q.pop(0)
        return out
    def emit(s,n=1):
        for _ in range(n):
            for k,t,tag in s.issue():
                if k=='s': s.e.I(t)
                else: s.e.vmi(t,tag)
    def off(s,tag): return s.loc[tag][0]

def U(*names): return [(UNIT[n],[n]) for n in names]
Rs=[f"R{i}" for i in range(7)]; Xs=[f"X{i}" for i in range(8)]; Qs=[f"Q{i}" for i in range(4)]

def mfma(d,a,b,first,ra='v',rb='v'):
    c="0" if first else f"v[{d}:{d+3}]"
    return f"v_mfma_f32_16x16x32_bf16 v[{d}:{d+3}], {ra}[{a}:{a+3}], {rb}[{b}:{b+3}], {c}"

def gen(stamps=0, rot="0,0,0,0", sc="", amp=""):
    e=Em(); I=e.I
    nst=[0]
    def stamp():
        if stamps:
            I(f"s_memrealtime s[{sST+2*nst[0]}:{sST+2*nst[0]+1}]"); I("s_waitcnt lgkmcnt(0)"); e.lgdone=len(e.lg); nst[0]+=1
    L=e.l
    L.append(f"; @launch kernel=gqa_main_kernel grid=(256,1,1) block=(256,1,1) lds=163840")
    L.append(f"; @launch kernel=gqa_red_kernel grid=(224,1,1) block=(256,1,1) lds=0")
    if amp: L.append("; @launch kernel=amp_kernel grid=(1,1,1) block=(64,1,1) lds=0")
    L.append('.amdgcn_target "amdgcn-amd-amdhsa--gfx950"')
    L.append(".text\n.globl gqa_main_kernel\n.p2align 8\n.type gqa_main_kernel,@function\ngqa_main_kernel:")
    I("s_cmp_ge_u32 s2, 256"); I("s_cbranch_scc1 L_main_end")
    stamp()
    I("s_load_dwordx4 s[4:7], s[0:1], 0"); I("s_load_dwordx4 s[8:11], s[0:1], 16")
    I("s_load_dwordx2 s[12:13], s[0:1], 32"); I("s_load_dwordx2 s[14:15], s[0:1], 56")
    I(f"v_lshrrev_b32 v2, 6, v0"); I(f"v_and_b32 v{vLane}, 63, v0"); I(f"v_readfirstlane_b32 s{sW}, v2")
    I(f"s_and_b32 s{sKVH}, s2, 7"); I(f"s_lshr_b32 s{sB}, s2, 5")
    I(f"s_bfe_u32 s{sHH}, s2, 0x10004"); I(f"s_bfe_u32 s{sRH}, s2, 0x10003")
    I(f"s_lshl_b32 s{sH}, s{sKVH}, 1"); I(f"s_add_u32 s{sH}, s{sH}, s{sHH}")
    I(f"s_mul_i32 s{sWB}, s{sW}, {WS}")
    def rotset(dst,spec,mod):
        if spec.isdigit(): I(f"s_mov_b32 s{dst}, {spec}")
        elif spec=="q":
            I(f"s_bfe_u32 s{dst}, s2, 0x20003")
        elif spec=="b":
            I(f"s_and_b32 s{dst}, s{sB}, 3")
        elif spec=="b7":
            I(f"s_cmp_eq_u32 s{sB}, 7"); I(f"s_cselect_b32 s{dst}, 3, s{sB}")
    r=rot.split(",")
    rotset(sRQ,r[0],7); rotset(sRD,r[1],4); rotset(sRK,r[2],4); rotset(sRO,r[3],4)
    e.C("lane decomposition for DMA: row8=lane>>3 (v2), p=lane&7 (v3)")
    I(f"v_lshrrev_b32 v2, 3, v{vLane}"); I(f"v_and_b32 v3, 7, v{vLane}")
    I("v_lshrrev_b32 v4, 1, v2")
    I("v_xor_b32 v5, v3, v4"); I("v_lshlrev_b32 v5, 4, v5")
    I("v_xor_b32 v6, 64, v5")
    I("v_lshlrev_b32 v7, 1, v4"); I("v_xor_b32 v7, v3, v7"); I("v_lshlrev_b32 v7, 4, v7")
    I("v_mul_u32_u24 v8, 896, v2")
    I(f"v_add_u32 v{vDx}, v8, v5")
    I(f"v_add_u32 v{vDx+1}, v8, v6"); I(f"v_add_u32 v{vDx+1}, {8*896-1024}, v{vDx+1}")
    I("v_lshrrev_b32 v8, 2, v2"); I("v_lshlrev_b32 v8, 3, v8"); I("v_and_b32 v9, 3, v2"); I("v_add_u32 v8, v8, v9")
    I("v_lshlrev_b32 v8, 13, v8"); I(f"v_add_u32 v{vDq}, v8, v7")
    for n in range(1,4):
        I(f"v_add_u32 v{vDq+n}, {((n&1)*16+(n>>1)*4)*8192-(n&1)*1024}, v{vDq}")
    e.C("scalar setup")
    I(f"s_mov_b32 s{sT}, s{sRQ}")
    I(f"s_add_u32 s{sQcol}, s{sW}, s{sRD}"); I(f"s_and_b32 s{sQcol}, s{sQcol}, 3"); I(f"s_lshl_b32 s{sQcol}, s{sQcol}, 7")
    I(f"s_mul_i32 s{sXrow}, s{sW}, {16*896}")
    for i in range(7):
        I(f"s_lshl_b32 s{sKB+i}, s{sT}, 7"); I(f"s_add_u32 s{sKB+i}, s{sKB+i}, s{sXrow}")
        I(f"s_lshl_b32 s{sQB+i}, s{sT}, 19"); I(f"s_add_u32 s{sQB+i}, s{sQB+i}, s{sQcol}")
        if i<6:
            I(f"s_add_u32 s{sT}, s{sT}, 1"); I(f"s_cmp_eq_u32 s{sT}, 7"); I(f"s_cselect_b32 s{sT}, 0, s{sT}")
    I("s_waitcnt lgkmcnt(0)")
    def srd(d,src,offreg,size):
        if offreg is None:
            I(f"s_mov_b32 s{d}, s{src}"); I(f"s_mov_b32 s{d+1}, s{src+1}")
        else:
            I(f"s_add_u32 s{d}, s{src}, s{offreg}"); I(f"s_addc_u32 s{d+1}, s{src+1}, 0")
        if size is not None: I(f"s_mov_b32 s{d+2}, {size}")
        I(f"s_mov_b32 s{d+3}, 0x20000")
    I(f"s_mul_i32 s{sT}, s{sB}, 112"); I(f"s_lshl_b32 s{sT2}, s{sRH}, 6"); I(f"s_add_u32 s{sT}, s{sT}, s{sT2}"); I(f"s_mul_i32 s{sT}, s{sT}, 896")
    srd(sX,4,sT,None)
    I(f"s_mul_i32 s{sT2}, s{sRH}, {16*896}"); I(f"s_sub_u32 s{sX+2}, {64*896}, s{sT2}")
    I(f"s_lshl_b32 s{sT}, s{sH}, 9")
    srd(sWQ,10,sT,None); I(f"s_sub_u32 s{sWQ+2}, {448*8192}, s{sT}")

    st=Stream(e)
    st.release(*Rs,*Xs,*Qs)
    xp=[];
    for i in range(7):
        xp.append((f"x{i}",U(f"X{i}"),[([],0,f"buffer_load_dwordx4 v{vDx}, s[{sX}:{sX+3}], s{sKB+i} offen lds"),
                                     ([],None,f"buffer_load_dwordx4 v{vDx+1}, s[{sX}:{sX+3}], s{sKB+i} offen offset:1024 lds")]))
    qp=[]
    for i in range(14):
        for hf in range(2):
            idx=2*i+hf
            al=U(*Qs,"X7") if idx>=23 else U(*Qs,"X7",*Rs)
            if i&1:
                pre=[f"s_add_u32 s{sOff}, s{sQB+(i>>1)}, {32*8192}"] if hf==0 else []
                so=sOff
            else: pre=[]; so=sQB+(i>>1)
            qp.append((f"q{i}{'AB'[hf]}",al,[(pre,0,f"buffer_load_dwordx4 v{vDq+2*hf}, s[{sWQ}:{sWQ+3}], s{so} offen lds"),
                                            ([],None,f"buffer_load_dwordx4 v{vDq+2*hf+1}, s[{sWQ}:{sWQ+3}], s{so} offen offset:1024 lds")]))
    order=[xp[0],qp[0],qp[1]]+xp[1:]+qp[2:]
    for p in order: st.add(*p)
    for ps in range(2):
        for i in range(4):
            for kt in range(4):
                idx=ps*16+i*4+kt
                al=U(*Xs) if idx>=24 else U(*Xs,*Rs)
                pre=[]
                if kt==0:
                    pre=[f"s_add_u32 s{sT}, s{sRD}, {i}", f"s_and_b32 s{sT}, s{sT}, 3", f"s_lshl_b32 s{sT}, s{sT}, 7", f"s_add_u32 s{sOff}, s{sT}, s{sKbase}"]
                    if ps: pre.append(f"s_add_u32 s{sOff}, s{sOff}, {64*512}")
                elif kt==2: pre=[f"s_add_u32 s{sOff}, s{sOff}, {32*512}"]
                j=2*(kt&1)
                st.add(f"k{ps}{i}{kt}",al,[(pre,0,f"buffer_load_dwordx4 v{vDk+j}, s[{sK}:{sK+3}], s{sOff} offen lds"),
                                           ([],None,f"buffer_load_dwordx4 v{vDk+j+1}, s[{sK}:{sK+3}], s{sOff} offen offset:1024 lds")])
    vl=Rs+Qs
    for i in range(16):
        for hf in range(2):
            idx=2*i+hf
            pre=[]
            if hf==0:
                if i==0: pre=[f"s_lshl_b32 s{sT2}, s{sRK}, 16", f"s_add_u32 s{sOff}, s{sT2}, s{sVcol}"]
                else: pre=[f"s_add_u32 s{sOff}, s{sOff}, {32*512}", f"s_and_b32 s{sOff}, s{sOff}, 0x3ffff"]
            st.add(f"v{i}{'AB'[hf]}",U(vl[(idx+1)%11]),[(pre,0,f"buffer_load_dwordx4 v{vDv+2*hf}, s[{sV}:{sV+3}], s{sOff} offen lds"),
                                                       ([],None,f"buffer_load_dwordx4 v{vDv+2*hf+1}, s[{sV}:{sV+3}], s{sOff} offen offset:1024 lds")])
    need=[["R0","R1","R2","R3"],["R4","R5","R6","R3h"],["X0","X1","X2","X3"],["X4","X5","X6","X7"]]
    for ks in range(8):
        pre=[f"s_add_u32 s{sT}, s{sRO}, {ks>>1}", f"s_and_b32 s{sT}, s{sT}, 3", f"s_mul_i32 s{sT}, s{sT}, {64*896}", f"s_add_u32 s{sOff}, s{sT}, s{sGam}"]
        if ks&1: pre=[f"s_add_u32 s{sOff}, s{sOff}, {32*896}"]
        ins=[]
        for i in range(7):
            ins.append((pre if i==0 else [], 0 if i==0 else (4096 if i==4 else None),
                        f"buffer_load_dwordx4 v{vDo+i}, s[{sWO}:{sWO+3}], s{sOff} offen"+(f" offset:{(i&3)*1024}" if i&3 else "")+" lds"))
        st.add(f"o{ks}",[(WOSLOT[ks&3],need[ks&3])],ins)

    st.emit(6)
    I(f"s_lshl_b32 s{sT}, s{sB}, 3"); I(f"s_add_u32 s{sT}, s{sT}, s{sKVH}"); I(f"s_lshl_b32 s{sT}, s{sT}, 18")
    srd(sK,6,sT,262144); srd(sV,8,sT,262144)
    I(f"s_mul_i32 s{sT}, s{sH}, 229376"); srd(sWO,12,sT,229376)
    srd(sWS,14,None,16*56*16*1024 if not stamps else 268435456)
    st.emit(12)
    I(f"s_add_u32 s{sKbase}, s{sW}, s{sRK}"); I(f"s_and_b32 s{sKbase}, s{sKbase}, 3"); I(f"s_lshl_b32 s{sKbase}, s{sKbase}, 16")
    I(f"s_add_u32 s{sVcol}, s{sW}, s{sRO}"); I(f"s_and_b32 s{sVcol}, s{sVcol}, 3"); I(f"s_lshl_b32 s{sVcol}, s{sVcol}, 7")
    I(f"s_and_b32 s{sGam}, s{sW}, 1"); I(f"s_lshl_b32 s{sGam}, s{sGam}, 1"); I(f"s_lshr_b32 s{sT}, s{sW}, 1"); I(f"s_add_u32 s{sGam}, s{sGam}, s{sT}"); I(f"s_mul_i32 s{sGam}, s{sGam}, {8*896}")
    I(f"s_mov_b32 s{sC}, 0x{np_f32_bits(math.log2(math.e)/16.0):08x}")
    st.emit(40)
    I("v_lshlrev_b32 v8, 9, v2")
    I(f"v_add_u32 v{vDv}, v8, v7")
    for n in range(1,4): I(f"v_add_u32 v{vDv+n}, {n*4096-(n&1)*1024}, v{vDv}")
    I(f"v_add_u32 v{vDk}, v8, v5"); I(f"v_add_u32 v{vDk+1}, v8, v6"); I(f"v_add_u32 v{vDk+1}, {4096-1024}, v{vDk+1}")
    I(f"v_add_u32 v{vDk+2}, 8192, v{vDk}"); I(f"v_add_u32 v{vDk+3}, 8192, v{vDk+1}")
    I(f"v_lshlrev_b32 v8, 4, v{vLane}")
    for i in range(7):
        f0=(i>>1)&3; f1=((i+1)>>1)&3; add=4096 if i>=4 else 0
        if f0==f1:
            I(f"v_xor_b32 v{vDo+i}, {(f0<<5)|add}, v8")
        else:
            I(f"v_cmp_gt_u32 vcc, {56-8*i}, v{vLane}")
            I(f"v_mov_b32 v9, {(f0<<5)|add}"); I(f"v_mov_b32 v{vDo+i}, {(f1<<5)|add}")
            I(f"v_cndmask_b32 v9, v{vDo+i}, v9, vcc"); I(f"v_xor_b32 v{vDo+i}, v9, v8")
    I(f"v_lshrrev_b32 v2, 4, v{vLane}"); I(f"v_and_b32 v3, 15, v{vLane}"); I(f"v_lshrrev_b32 v4, 2, v3"); I(f"v_and_b32 v5, 3, v{vLane}")
    I(f"v_lshrrev_b32 v6, 2, v{vLane}")
    I("v_lshrrev_b32 v7, 1, v6"); I("v_and_b32 v7, 3, v7"); I("v_lshlrev_b32 v7, 5, v7")
    I("v_lshlrev_b32 v8, 7, v6"); I("v_lshl_add_u32 v8, v5, 3, v8"); I(f"v_add_u32 v8, s{sWB}, v8")
    for t in range(4):
        I(f"v_xor_b32 v9, {t<<5}, v7"); I(f"v_add_u32 v{vTr+t}, v8, v9")
    I("v_and_b32 v8, 7, v6"); I("v_mul_u32_u24 v8, 896, v8"); I("v_lshl_add_u32 v8, v5, 3, v8")
    I("v_lshrrev_b32 v9, 1, v2"); I(f"v_mul_u32_u24 v9, {2*WS}, v9"); I("v_add_u32 v8, v8, v9")
    I(f"s_mul_i32 s{sT}, s{sW}, {7*32}")
    for nt in range(7):
        I(f"v_xor_b32 v9, s{sT}, v7"); I(f"v_add_u32 v{vWo+nt}, v8, v9")
        if nt<6: I(f"s_add_u32 s{sT}, s{sT}, 32")
    I("v_lshlrev_b32 v8, 7, v3")
    I("v_lshrrev_b32 v9, 1, v3"); I("v_xor_b32 v9, v2, v9"); I("v_lshl_add_u32 v8, v9, 4, v8")
    I("v_xor_b32 v9, 64, v8")
    I(f"v_add_u32 v{vKa}, s{sWB}, v8"); I(f"v_add_u32 v{vKa+1}, s{sWB}, v9")
    I(f"v_mov_b32 v{vXb}, v8"); I(f"v_add_u32 v{vXb+1}, {2*WS}, v8"); I(f"v_mov_b32 v{vXb+2}, v9"); I(f"v_add_u32 v{vXb+3}, {2*WS}, v9")
    I(f"v_lshlrev_b32 v{vLinX}, 4, v{vLane}"); I(f"v_add_u32 v{vLinX+1}, {2*WS}, v{vLinX}")
    I(f"v_add_u32 v{vLinQ}, {QO}, v{vLinX}"); I(f"v_add_u32 v{vLinQ+1}, {QO+2*WS}, v{vLinX}")
    I(f"v_add_u32 v{vPw}, s{sWB}, v{vLinX}")
    I("v_lshrrev_b32 v8, 1, v2"); I("v_lshl_add_u32 v8, v8, 4, v3"); I("v_lshlrev_b32 v8, 4, v8")
    I("v_and_b32 v9, 1, v2"); I("v_lshl_add_u32 v8, v9, 3, v8"); I(f"v_add_u32 v8, s{sWB}, v8"); I(f"v_add_u32 v{vQw}, {QO}, v8")
    I("v_lshlrev_b32 v9, 1, v9"); I("v_lshrrev_b32 v8, 1, v2"); I("v_add_u32 v8, v8, v9"); I("v_lshl_add_u32 v8, v8, 4, v3"); I("v_lshlrev_b32 v8, 4, v8")
    I(f"s_lshl_b32 s{sT}, s{sW}, 2"); I(f"s_add_u32 s{sT}, s{sT}, {MO}"); I(f"v_add_u32 v{vMw}, s{sT}, v8")
    I(f"v_lshlrev_b32 v{vMr}, 4, v3"); I(f"v_add_u32 v{vMr}, {MO}, v{vMr}")

    def barrier(): I("s_barrier")

    def run_step(mf, reads, dmagaps, rgaps=None):
        n=len(mf)
        if rgaps is None: rgaps=list(range(len(reads)))
        for gi,m in enumerate(mf):
            I(m)
            for ri,rg in enumerate(rgaps):
                if rg==gi: e.lgi(*reads[ri])
            for _ in range(dmagaps.count(gi)): st.emit(1)

    def tr_reads(tagA,tagB,base,rt):
        out=[]
        for t in range(4):
            out.append((f"ds_read_b64_tr_b16 v[{base+4*t}:{base+4*t+1}], v{vTr+t} offset:{st.off(tagA)}",rt))
            out.append((f"ds_read_b64_tr_b16 v[{base+4*t+2}:{base+4*t+3}], v{vTr+t} offset:{st.off(tagB)}",rt))
        return out
    def order_reads(a,b):
        k=len(a)//4
        return a[:k]+b+a[k:]
    DG=[1,5,9,13]
    RG=[0,2,3,4,6,7,8,10,11,12,14,15]
    RG=[0,0,2,3,4,6,7,8,10,11,12,12]

    e.C("==== P1")
    e.wait(vm=[f"x{i}" for i in range(7)]+["q0A","q0B"]); barrier()
    stamp()
    def p1_reads(i):
        base=FR+32*(i&1)
        a=tr_reads(f"q{i}A",f"q{i}B",base,f"f1_{i}")
        b=[(f"ds_read_b128 v[{base+16+4*qt}:{base+19+4*qt}], v{vXb+2*(i&1)+(qt>>1)} offset:{(qt&1)*WS+(i>>1)*2048}",f"f1_{i}") for qt in range(4)]
        return order_reads(a,b)
    for x in p1_reads(0): e.lgi(*x)
    for i in range(14):
        base=FR+32*(i&1)
        nxt=[f"q{i+1}A",f"q{i+1}B"] if i<13 else []
        e.wait(vm=nxt,lg=[f"f1_{i}"])
        st.release_tag(f"q{i}A"); st.release_tag(f"q{i}B")
        mf=[mfma(ACC+4*(4*t+qt),base+4*t,base+16+4*qt,i==0) for t in range(4) for qt in range(4)]
        run_step(mf,p1_reads(i+1) if i<13 else [],DG,RG if i<13 else [])
    for u in Qs: assert u in st.free, u
    for u in Qs: st.free.discard(u)
    I("s_nop 7")
    for t in range(4):
        for qt in range(4):
            d=ACC+4*(4*t+qt); tmp=FR+2*((4*t+qt)%8)
            I(f"v_cvt_pk_bf16_f32 v{tmp}, v{d}, v{d+1}"); I(f"v_cvt_pk_bf16_f32 v{tmp+1}, v{d+2}, v{d+3}")
            e.lgi(f"ds_write_b64 v{vQw}, v[{tmp}:{tmp+1}] offset:{((t>>1)*4+qt)*1024+(t&1)*512}","qw")
    e.wait(lgall=True); barrier()
    stamp()
    st.release(*[f"X{i}" for i in range(7)])
    st.emit(8)
    e.C("==== P2")
    def p2_reads(s):
        ps,i,par=s>>3,(s>>1)&3,s&1
        base=FR+32*(s&1)
        a=[(f"ds_read_b128 v[{base+4*kt}:{base+4*kt+3}], v{vKa+par} offset:{st.off(f'k{ps}{i}{kt}')}",f"f2_{s}") for kt in range(4)]
        b=[]
        if ps==0:
            for qt in range(4):
                ar=16*s+4*qt
                b.append((f"ds_read_b128 a[{ar}:{ar+3}], v{vLinQ+(i>>1)} offset:{(i&1)*WS+(par*4+qt)*1024}",f"f2_{s}"))
        return order_reads(a,b)
    def ktags(s): return [f"k{s>>3}{(s>>1)&3}{kt}" for kt in range(4)]
    e.wait(vm=ktags(0))
    for x in p2_reads(0): e.lgi(*x)
    for s in range(16):
        base=FR+32*(s&1); ps=s>>3
        e.wait(vm=ktags(s+1) if s<15 else [],lg=[f"f2_{s}"])
        if s&1:
            for t in ktags(s): st.release_tag(t)
        mf=[mfma(ACC+64*ps+4*(4*kt+qt),base+4*kt,16*(s&7)+4*qt,(s&7)==0,rb='a') for kt in range(4) for qt in range(4)]
        rd=p2_reads(s+1) if s<15 else []
        run_step(mf,rd,DG,RG[1:1+len(rd)])
    for u in Xs: assert u in st.free, u
    for u in Xs: st.free.discard(u)
    stamp()
    e.C("==== softmax")
    def S(ps,kt,qt,r): return ACC+64*ps+4*(4*kt+qt)+r
    I("s_nop 7")
    for qt in range(4):
        vals=[S(ps,kt,qt,r) for ps in range(2) for kt in range(4) for r in range(4)]
        I(f"v_max_f32 v{vNm+qt}, v{vals[0]}, v{vals[1]}")
    for k in range(1,16):
        for qt in range(4):
            vals=[S(ps,kt,qt,r) for ps in range(2) for kt in range(4) for r in range(4)]
            I(f"v_max3_f32 v{vNm+qt}, v{vals[2*k]}, v{vals[2*k+1]}, v{vNm+qt}")
    def xreduce(b,op):
        I("s_nop 1")
        I(f"v_permlane32_swap_b32 v{b}, v{b+1}"); I(f"v_permlane32_swap_b32 v{b+2}, v{b+3}")
        I("s_nop 1")
        I(f"{op} v{b}, v{b}, v{b+1}"); I(f"{op} v{b+2}, v{b+2}, v{b+3}")
        I("s_nop 1")
        I(f"v_permlane16_swap_b32 v{b}, v{b+2}")
        I("s_nop 1")
        I(f"{op} v{b}, v{b}, v{b+2}")
    xreduce(vNm,"v_max_f32")
    e.lgi(f"ds_write_b32 v{vMw}, v{vNm}","mw")
    e.wait(lgall=True); barrier()
    st.release(*Qs)
    for qt in range(4): e.lgi(f"ds_read_b128 v[{FR+4*qt}:{FR+4*qt+3}], v{vMr} offset:{qt*256}","mr")
    st.emit(8)
    e.wait(lgall=True)
    for qt in range(4):
        b=FR+4*qt
        I(f"v_max3_f32 v{b}, v{b}, v{b+1}, v{b+2}")
    for qt in range(4):
        b=FR+4*qt
        I(f"v_max_f32 v{b}, v{b}, v{b+3}")
    for qt in range(4):
        I(f"v_mul_f32 v{vNm+qt}, s{sC}, v{FR+4*qt}")
    for m in range(4):
        ps,kp=m>>1,m&1
        for qt in range(4):
            vals=[S(ps,2*kp+kk,qt,r) for kk in range(2) for r in range(4)]
            for v in vals: I(f"v_fma_f32 v{v}, v{v}, s{sC}, -v{vNm+qt}")
            for v in vals: I(f"v_exp_f32 v{v}, v{v}")
            tmp=FR+4*((4*m+qt)%8)
            for j in range(4): I(f"v_cvt_pk_bf16_f32 v{tmp+j}, v{vals[2*j]}, v{vals[2*j+1]}")
            e.lgi(f"ds_write_b128 v{vPw}, v[{tmp}:{tmp+3}] offset:{XO+(m*4+qt)*1024}","pw")
            I(f"v_add_f32 v{vals[0]}, v{vals[0]}, v{vals[1]}"); I(f"v_add_f32 v{vals[2]}, v{vals[2]}, v{vals[3]}")
            I(f"v_add_f32 v{vals[4]}, v{vals[4]}, v{vals[5]}"); I(f"v_add_f32 v{vals[6]}, v{vals[6]}, v{vals[7]}")
            I(f"v_add_f32 v{vals[0]}, v{vals[0]}, v{vals[2]}"); I(f"v_add_f32 v{vals[4]}, v{vals[4]}, v{vals[6]}")
            if m==0: I(f"v_add_f32 v{vSum+qt}, v{vals[0]}, v{vals[4]}")
            else: I(f"v_add3_f32_placeholder")  if False else (I(f"v_add_f32 v{vals[0]}, v{vals[0]}, v{vals[4]}"), I(f"v_add_f32 v{vSum+qt}, v{vSum+qt}, v{vals[0]}"))
            st.emit(1)
    xreduce(vSum,"v_add_f32")
    e.lgi(f"ds_write_b32 v{vMw}, v{vSum} offset:1024","sw")
    e.wait(lgall=True); barrier()
    stamp()
    e.C("==== P3")
    def p3_reads(i):
        base=FR+32*(i&1); rg=i>>2
        a=tr_reads(f"v{i}A",f"v{i}B",base,f"f3_{i}")
        b=[(f"ds_read_b128 v[{base+16+4*qt}:{base+19+4*qt}], v{vLinX+(rg>>1)} offset:{(rg&1)*WS+((i&3)*4+qt)*1024}",f"f3_{i}") for qt in range(4)]
        return order_reads(a,b)
    e.wait(vm=["v0A","v0B"])
    for x in p3_reads(0): e.lgi(*x)
    for i in range(16):
        base=FR+32*(i&1)
        e.wait(vm=[f"v{i+1}A",f"v{i+1}B"] if i<15 else [],lg=[f"f3_{i}"])
        st.release_tag(f"v{i}A"); st.release_tag(f"v{i}B")
        if "o0" in st.loc and "R3h" not in st.free and "o1" not in st.loc: st.release("R3h")
        mf=[mfma(ACC+4*(4*t+qt),base+4*t,base+16+4*qt,i==0) for t in range(4) for qt in range(4)]
        if i<15: run_step(mf,p3_reads(i+1),DG,RG)
        else:
            rd=[(f"ds_read_b128 v[{FR+4*qt}:{FR+4*qt+3}], v{vMr} offset:{1024+qt*256}","sr") for qt in range(4)]
            run_step(mf,rd,DG,[0,2,3,4])
    for u in Qs: assert u in st.free, u
    for u in Qs: st.free.discard(u)
    if "R3h" not in st.free and "o1" not in st.loc: st.release("R3h")
    stamp()
    e.wait(lg=["sr"])
    for qt in range(4):
        b=FR+4*qt
        I(f"v_add_f32 v{b}, v{b}, v{b+1}"); I(f"v_add_f32 v{b+2}, v{b+2}, v{b+3}")
    for qt in range(4):
        b=FR+4*qt
        I(f"v_add_f32 v{b}, v{b}, v{b+2}")
    for qt in range(4): I(f"v_rcp_f32 v{vSum+qt}, v{FR+4*qt}")
    I("s_nop 0")
    for m in range(2):
        for qt in range(4):
            vals=[ACC+4*(4*(2*m+kk)+qt)+r for kk in range(2) for r in range(4)]
            for v in vals: I(f"v_mul_f32 v{v}, v{v}, v{vSum+qt}")
            tmp=FR+32+4*((4*m+qt)%8)
            for j in range(4): I(f"v_cvt_pk_bf16_f32 v{tmp+j}, v{vals[2*j]}, v{vals[2*j+1]}")
            e.lgi(f"ds_write_b128 v{vPw}, v[{tmp}:{tmp+3}] offset:{QO+(m*4+qt)*1024}","ow")
            st.emit(1)
    while "o1" not in st.loc or (st.q and st.q[0]['tag'] in ("o0","o1")): st.emit(1)
    e.wait(vm=["o0"],lgall=True); barrier()
    st.release(*Xs)
    stamp()
    e.C("==== P4")
    def p4_reads(ks):
        base=FR+28*(ks&1); rg=ks>>1; so=st.off(f"o{ks}")
        a=[]
        for nt in range(7):
            a.append((f"ds_read_b64_tr_b16 v[{base+4*nt}:{base+4*nt+1}], v{vWo+nt} offset:{so}",f"f4_{ks}"))
            a.append((f"ds_read_b64_tr_b16 v[{base+4*nt+2}:{base+4*nt+3}], v{vWo+nt} offset:{so+WS}",f"f4_{ks}"))
        b=[(f"ds_read_b128 a[{16*ks+4*qt}:{16*ks+4*qt+3}], v{vLinQ+(rg>>1)} offset:{(rg&1)*WS+((ks&1)*4+qt)*1024}",f"f4_{ks}") for qt in range(4)]
        return a[:2]+b+a[2:]
    for x in p4_reads(0): e.lgi(*x)
    st.emit(14)
    for ks in range(8):
        base=FR+28*(ks&1)
        e.wait(vm=[f"o{ks+1}"] if ks<7 else [],lg=[f"f4_{ks}"])
        if ks<7: barrier()
        st.release_tag(f"o{ks}")
        mf=[mfma(ACC+4*(4*nt+qt),base+4*nt,16*ks+4*qt,ks==0,rb='a') for nt in range(7) for qt in range(4)]
        rd=p4_reads(ks+1) if ks<7 else []
        dg=[1,5,9,13,17,21,25]
        rgs=[g for g in range(28) if g not in dg][:len(rd)]
        run_step(mf,rd,dg,rgs)
    assert not st.q
    stamp()
    I(f"s_lshl_b32 s{sT}, s{sB}, 1"); I(f"s_add_u32 s{sT}, s{sT}, s{sRH}"); I(f"s_mul_i32 s{sT}, s{sT}, 56")
    I(f"s_mul_i32 s{sT2}, s{sW}, 14"); I(f"s_add_u32 s{sT}, s{sT}, s{sT2}"); I(f"s_lshl_b32 s{sT}, s{sT}, 4"); I(f"s_add_u32 s{sT}, s{sT}, s{sH}"); I(f"s_lshl_b32 s{sOff}, s{sT}, 10")
    I("s_nop 3")
    for nt in range(7):
        for pr in range(2):
            d=ACC+4*(4*nt+2*pr); tmp=FR+4*((2*nt+pr)%14)
            for j in range(4): I(f"v_cvt_pk_bf16_f32 v{tmp+j}, v{d+2*j}, v{d+2*j+1}")
            e.vmi(f"buffer_store_dwordx4 v[{tmp}:{tmp+3}], v{vLinX}, s[{sWS}:{sWS+3}], s{sOff} offen{sc}","st")
            I(f"s_add_u32 s{sOff}, s{sOff}, 16384")
    if stamps:
        e.wait(vmall=True); stamp()
        I(f"s_lshl_b32 s{sT}, s2, 2"); I(f"s_add_u32 s{sT}, s{sT}, s{sW}"); I(f"s_lshl_b32 s{sT}, s{sT}, 6"); I(f"s_add_u32 s{sT}, s{sT}, 0x4000000")
        I("v_mov_b32 v2, 0")
        for i in range(nst[0]):
            I(f"v_mov_b32 v3, s{sST+2*i}"); I(f"buffer_store_dword v3, v2, s[{sWS}:{sWS+3}], s{sT} offen offset:{4*i}"); I("s_nop 1")
    L.append("L_main_end:"); I("s_endpgm")

    L.append(".globl gqa_red_kernel\n.p2align 8\n.type gqa_red_kernel,@function\ngqa_red_kernel:")
    I("s_cmp_ge_u32 s2, 224"); I("s_cbranch_scc1 L_red_end")
    if stamps: I("s_memrealtime s[40:41]")
    I("s_load_dwordx2 s[4:5], s[0:1], 40"); I("s_load_dwordx2 s[6:7], s[0:1], 56")
    I("v_lshrrev_b32 v2, 6, v0"); I("v_and_b32 v1, 63, v0"); I("v_readfirstlane_b32 s8, v2")
    I("s_lshl_b32 s9, s2, 2"); I("s_add_u32 s9, s9, s8")
    I("s_lshl_b32 s10, s9, 14")
    I("v_lshlrev_b32 v3, 4, v1")
    I("s_waitcnt lgkmcnt(0)")
    I("s_mov_b32 s16, s6"); I("s_mov_b32 s17, s7"); I(f"s_mov_b32 s18, {16*56*16*1024 if not stamps else 268435456}"); I("s_mov_b32 s19, 0x20000")
    I("s_mov_b32 s20, s4"); I("s_mov_b32 s21, s5"); I(f"s_mov_b32 s22, {8*112*448*2}"); I("s_mov_b32 s23, 0x20000")
    for h in range(16):
        I(f"buffer_load_dwordx4 v[{16+4*h}:{19+4*h}], v3, s[16:19], s10 offen"+(f" offset:{(h&3)*1024}" if h&3 else ""))
        if (h&3)==3 and h<15: I("s_add_u32 s10, s10, 4096")
    I(f"s_mul_i32 s11, s9, {math.ceil(65536/56)}"); I("s_lshr_b32 s11, s11, 16")
    I("s_mul_i32 s12, s11, 56"); I("s_sub_u32 s12, s9, s12")
    I(f"s_mul_i32 s13, s12, {math.ceil(65536/14)}"); I("s_lshr_b32 s13, s13, 16")
    I("s_mul_i32 s14, s13, 14"); I("s_sub_u32 s14, s12, s14")
    I("s_lshr_b32 s15, s14, 1"); I("s_and_b32 s14, s14, 1")
    I("s_lshr_b32 s24, s11, 1"); I("s_and_b32 s25, s11, 1")
    I("s_mul_i32 s26, s24, 112"); I("s_lshl_b32 s27, s25, 6"); I("s_add_u32 s26, s26, s27"); I("s_lshl_b32 s27, s14, 5"); I("s_add_u32 s26, s26, s27")
    I("s_mul_i32 s26, s26, 896")
    I("s_mul_i32 s27, s13, 224"); I("s_add_u32 s26, s26, s27"); I("s_lshl_b32 s27, s15, 5"); I("s_add_u32 s26, s26, s27")
    I("v_and_b32 v4, 15, v1"); I("v_mul_u32_u24 v4, 896, v4"); I("v_lshrrev_b32 v5, 4, v1"); I("v_lshl_add_u32 v4, v5, 3, v4")
    I("s_mov_b32 s28, 0xffff0000")
    for h in range(16):
        I(f"s_waitcnt vmcnt({15-h})")
        for j in range(4):
            r=16+4*h+j
            if h==0:
                I(f"v_lshlrev_b32 v{8+2*j}, 16, v{r}"); I(f"v_and_b32 v{9+2*j}, s28, v{r}")
            else:
                I(f"v_lshlrev_b32 v6, 16, v{r}"); I(f"v_and_b32 v7, s28, v{r}")
                I(f"v_add_f32 v{8+2*j}, v{8+2*j}, v6"); I(f"v_add_f32 v{9+2*j}, v{9+2*j}, v7")
    for j in range(4): I(f"v_cvt_pk_bf16_f32 v{16+j}, v{8+2*j}, v{9+2*j}")
    I("buffer_store_dwordx2 v[16:17], v4, s[20:23], s26 offen")
    if stamps:
        I("s_waitcnt vmcnt(0)"); I("s_memrealtime s[42:43]"); I("s_waitcnt lgkmcnt(0)")
        I("s_lshl_b32 s44, s9, 6"); I("s_add_u32 s44, s44, 0x4000000"); I("v_mov_b32 v2, 0"); I("v_mov_b32 v6, s40"); I("v_mov_b32 v7, s42")
        I("buffer_store_dwordx2 v[6:7], v2, s[16:19], s44 offen offset:40")
    I("s_and_b32 s27, s25, s14"); I("s_cmp_lg_u32 s27, 0"); I("s_cbranch_scc1 L_red_end")
    I(f"s_add_u32 s26, s26, {16*896}")
    I("buffer_store_dwordx2 v[18:19], v4, s[20:23], s26 offen")
    L.append("L_red_end:"); I("s_endpgm")
    kl=[("gqa_main_kernel",384,256),("gqa_red_kernel",80,80)]
    if amp:
        a0,a1=[int(x) for x in str(amp).split("_")]
        kl.append(("amp_kernel",8,8))
        L.append(".globl amp_kernel\n.p2align 8\n.type amp_kernel,@function\namp_kernel:")
        I("s_cmp_ge_u32 s2, 1"); I("s_cbranch_scc1 L_amp_end")
        I("s_memrealtime s[30:31]")
        I("s_load_dwordx2 s[6:7], s[0:1], 56"); I("s_waitcnt lgkmcnt(0)")
        I(f"s_add_u32 s6, s6, {0x4000000+100*4*64}"); I("s_addc_u32 s7, s7, 0")
        I(f"s_load_dword s8, s[6:7], {4*a0}"); I(f"s_load_dword s9, s[6:7], {4*a1}"); I("s_memrealtime s[10:11]"); I("s_waitcnt lgkmcnt(0)")
        if a1==12: I("s_mov_b32 s9, s30")
        I("s_sub_u32 s8, s9, s8"); I("s_min_u32 s8, s8, 10000"); I("s_mul_i32 s8, s8, 10")
        L.append("L_amp_loop:")
        I("s_memrealtime s[12:13]"); I("s_waitcnt lgkmcnt(0)"); I("s_sub_u32 s14, s12, s10"); I("s_cmp_lt_u32 s14, s8"); I("s_cbranch_scc1 L_amp_loop")
        L.append("L_amp_end:"); I("s_endpgm")
    L.append('.section .rodata,"a"')
    for nm,nv,ao in kl:
        L.append(f".p2align 6\n.amdhsa_kernel {nm}\n  .amdhsa_next_free_vgpr {nv}\n  .amdhsa_next_free_sgpr 102\n  .amdhsa_accum_offset {ao}\n  .amdhsa_group_segment_fixed_size 0\n  .amdhsa_kernarg_size 64\n  .amdhsa_user_sgpr_count 2\n  .amdhsa_user_sgpr_kernarg_segment_ptr 1\n  .amdhsa_system_sgpr_workgroup_id_x 1\n.end_amdhsa_kernel")
    return "\n".join(L)+"\n"

def np_f32_bits(x):
    import struct
    return struct.unpack("<I",struct.pack("<f",x))[0]

if __name__=="__main__":
    kw={}
    for a in sys.argv[2:]:
        k,v=a.split("=")
        try: v=int(v) if "_" not in v else v
        except: pass
        kw[k]=v
    if "sc" in kw: kw["sc"]=" "+kw["sc"].replace("_"," ")
    open(sys.argv[1],"w").write(gen(**kw))
```

```python
import sys, math, struct

NAME = "standalone__gqa_block_cached__near_ridge_kernel"
WS = 40960
XO, RO, MO, QO = 0, 16384, 30720, 32768
UNIT = {}
for i in range(8): UNIT[f"X{i}"] = XO + 2048*i
for i in range(7): UNIT[f"R{i}"] = RO + 2048*i
for i in range(4): UNIT[f"Q{i}"] = QO + 2048*i
WOSLOT = [RO, RO+7168, XO, XO+7168]
FLG = 0x1000000
NSLOT = FLG + 0x4000
WSUSED = NSLOT + 128
STO = 0x4000000

vLane=1; vS0=2; vS1=3; vNon=4
vDq=10; vDv=14; vDk=18; vDx=22; vDo=24
vTr=31; vKa=35; vXb=37; vLinX=41; vLinQ=43; vQw=45; vPw=46; vMw=47; vMr=48; vWo=49
vNm=56; vSum=60
FR=64
T=112
ACC=128
sX,sK,sV,sWQ,sWO,sWS,sOUT,sDBG = 16,20,24,28,32,36,76,80
sKVH,sB,sHH,sRH,sH,sW,sWB = 40,41,42,43,44,45,46
sRQ,sRD,sRK,sRO = 47,48,49,50
sOff=51; sT=52; sT2=53; sC=54; sKbase=55; sVcol=56; sQcol=57; sGam=58; sXrow=59
sKB=60; sQB=67
sOld=74; sG=75
sP=84
sST=92

def f32(x): return struct.unpack("<I",struct.pack("<f",x))[0]

class Em:
    def __init__(s):
        s.l=[]; s.vm=[]; s.lg=[]; s.vmdone=0; s.lgdone=0
    def I(s,x): s.l.append("  "+x)
    def C(s,x): s.l.append("  ; "+x)
    def vmi(s,x,tag): s.I(x); s.vm.append(tag)
    def lgi(s,x,tag): s.I(x); s.lg.append(tag)
    def _need(s,lst,done,tags,mx):
        idx=-1
        for t in tags:
            c=[i for i,u in enumerate(lst) if u==t]
            assert c, f"tag {t} never issued"
            idx=max(idx,c[-1])
        if idx<done: return None,done
        n=min(len(lst)-1-idx,mx)
        return n,len(lst)-n
    def wait(s,vm=(),lg=(),lgall=False,vmall=False):
        parts=[]
        if vmall:
            parts.append("vmcnt(0)"); s.vmdone=len(s.vm)
        elif vm:
            n,d=s._need(s.vm,s.vmdone,vm,63)
            if n is not None: parts.append(f"vmcnt({n})"); s.vmdone=d
        if lgall:
            parts.append("lgkmcnt(0)"); s.lgdone=len(s.lg)
        elif lg:
            n,d=s._need(s.lg,s.lgdone,lg,15)
            if n is not None: parts.append(f"lgkmcnt({n})"); s.lgdone=d
        if parts: s.I("s_waitcnt "+" ".join(parts))

class Stream:
    def __init__(s,e):
        s.e=e; s.q=[]; s.free=set(); s.loc={}; s.done=set()
    def add(s,tag,allowed,instrs):
        s.q.append(dict(tag=tag,allowed=allowed,instrs=instrs,i=0))
    def release(s,*units):
        for u in units: s.free.add(u)
    def release_tag(s,tag): s.release(*s.loc[tag][1])
    def can(s):
        if not s.q: return False
        p=s.q[0]
        if p['i']>0: return True
        return any(all(u in s.free for u in opt[1]) for opt in p['allowed'])
    def issue(s):
        if not s.can(): return []
        p=s.q[0]
        if p['i']==0:
            for opt in p['allowed']:
                if all(u in s.free for u in opt[1]):
                    for u in opt[1]: s.free.discard(u)
                    s.loc[p['tag']]=opt; break
        base=s.loc[p['tag']][0]
        pre,m0add,txt=p['instrs'][p['i']]
        out=[('s',x,None) for x in pre]
        if m0add is not None:
            out.insert(0,('s',f"s_add_u32 m0, s{sWB}, {base+m0add}",None))
            if not pre: out.append(('s',"s_nop 0",None))
        out.append(('v',txt,p['tag']))
        p['i']+=1
        if p['i']==len(p['instrs']): s.q.pop(0); s.done.add(p['tag'])
        return out
    def emit(s,n=1):
        for _ in range(n):
            for k,t,tag in s.issue():
                if k=='s': s.e.I(t)
                else: s.e.vmi("s_nop 0" if s.nodma else t,tag)
    def ensure(s,tags):
        for t in tags:
            while t not in s.done:
                assert s.can(), f"stream stuck before {t}"
                s.emit(1)
    def off(s,tag): return s.loc[tag][0]

def U(*names): return [(UNIT[n],[n]) for n in names]
Rs=[f"R{i}" for i in range(7)]; Xs=[f"X{i}" for i in range(8)]; Qs=[f"Q{i}" for i in range(4)]

def mfma(d,a,b,first,ra='v',rb='v'):
    c="0" if first else f"v[{d}:{d+3}]"
    return f"v_mfma_f32_16x16x32_bf16 v[{d}:{d+3}], {ra}[{a}:{a+3}], {rb}[{b}:{b+3}], {c}"

def gen(stamps=0, rot="b7,q,q,b", sc="sc1", amp="", pro=12, pro2=0, ramp=8, sleep=1, nodma=0, hot=0):
    sc=" "+sc.replace("_"," ") if sc else ""
    e=Em(); I=e.I
    nst=[0]; names=[]
    def stamp(name):
        if stamps:
            I(f"s_memtime s[{sST}:{sST+1}]"); I(f"s_memrealtime s[{sST+2}:{sST+3}]"); I("s_waitcnt lgkmcnt(0)"); e.lgdone=len(e.lg)
            I(f"v_writelane_b32 v{vS0}, s{sST}, {nst[0]}"); I(f"v_writelane_b32 v{vS1}, s{sST+2}, {nst[0]}"); nst[0]+=1; names.append(name)
    L=e.l
    if amp:
        L.append(f"; @launch kernel={NAME} grid=(256,1,1) block=(256,1,1) lds=163840")
        L.append("; @launch kernel=amp_kernel grid=(1,1,1) block=(64,1,1) lds=0")
    else:
        L.append(f"; @launch grid=(256,1,1) block=(256,1,1) lds=163840")
    L.append('.amdgcn_target "amdgcn-amd-amdhsa--gfx950"')
    L.append(f".text\n.globl {NAME}\n.p2align 8\n.type {NAME},@function\n{NAME}:")
    I("s_cmp_ge_u32 s2, 256"); I("s_cbranch_scc1 L_end")
    stamp("start")
    I("s_load_dwordx4 s[4:7], s[0:1], 0"); I("s_load_dwordx4 s[8:11], s[0:1], 16")
    I(f"s_load_dwordx8 s[{sP}:{sP+7}], s[0:1], 32")
    pWO,pOUT,pDBG,pWS=sP,sP+2,sP+4,sP+6
    I(f"v_lshrrev_b32 v{T}, 6, v0"); I(f"v_and_b32 v{vLane}, 63, v0"); I(f"v_readfirstlane_b32 s{sW}, v{T}")
    I(f"s_and_b32 s{sKVH}, s2, 7"); I(f"s_lshr_b32 s{sB}, s2, 5")
    I(f"s_bfe_u32 s{sHH}, s2, 0x10004"); I(f"s_bfe_u32 s{sRH}, s2, 0x10003")
    I(f"s_lshl_b32 s{sH}, s{sKVH}, 1"); I(f"s_add_u32 s{sH}, s{sH}, s{sHH}")
    I(f"s_mul_i32 s{sWB}, s{sW}, {WS}")
    def rotset(dst,spec):
        if spec.isdigit(): I(f"s_mov_b32 s{dst}, {spec}")
        elif spec=="q": I(f"s_bfe_u32 s{dst}, s2, 0x20003")
        elif spec=="b": I(f"s_and_b32 s{dst}, s{sB}, 3")
        elif spec=="b7": I(f"s_cmp_eq_u32 s{sB}, 7"); I(f"s_cselect_b32 s{dst}, 3, s{sB}")
    r=rot.split(",")
    rotset(sRQ,r[0]); rotset(sRD,r[1]); rotset(sRK,r[2]); rotset(sRO,r[3])
    t=lambda i: f"v{T+i}"
    e.C("DMA lane decomposition: t0=row8 t1=p t2=row8>>1 t3=nat even t4=nat odd t5=tr swz")
    I(f"v_lshrrev_b32 {t(0)}, 3, v{vLane}"); I(f"v_and_b32 {t(1)}, 7, v{vLane}")
    I(f"v_lshrrev_b32 {t(2)}, 1, {t(0)}")
    I(f"v_xor_b32 {t(3)}, {t(1)}, {t(2)}"); I(f"v_lshlrev_b32 {t(3)}, 4, {t(3)}")
    I(f"v_xor_b32 {t(4)}, 64, {t(3)}")
    I(f"v_lshlrev_b32 {t(5)}, 1, {t(2)}"); I(f"v_xor_b32 {t(5)}, {t(1)}, {t(5)}"); I(f"v_lshlrev_b32 {t(5)}, 4, {t(5)}")
    I(f"v_mul_u32_u24 {t(6)}, 896, {t(0)}")
    I(f"v_add_u32 v{vDx}, {t(6)}, {t(3)}")
    I(f"v_add_u32 v{vDx+1}, {t(6)}, {t(4)}"); I(f"v_add_u32 v{vDx+1}, {8*896-1024}, v{vDx+1}")
    I(f"v_lshrrev_b32 {t(6)}, 2, {t(0)}"); I(f"v_lshlrev_b32 {t(6)}, 3, {t(6)}"); I(f"v_and_b32 {t(7)}, 3, {t(0)}"); I(f"v_add_u32 {t(6)}, {t(6)}, {t(7)}")
    I(f"v_lshlrev_b32 {t(6)}, 13, {t(6)}"); I(f"v_add_u32 v{vDq}, {t(6)}, {t(5)}")
    for n in range(1,4):
        I(f"v_add_u32 v{vDq+n}, {((n&1)*16+(n>>1)*4)*8192-(n&1)*1024}, v{vDq}")
    I(f"s_mov_b32 s{sT}, s{sRQ}")
    I(f"s_add_u32 s{sQcol}, s{sW}, s{sRD}"); I(f"s_and_b32 s{sQcol}, s{sQcol}, 3"); I(f"s_lshl_b32 s{sQcol}, s{sQcol}, 7")
    I(f"s_mul_i32 s{sXrow}, s{sW}, {16*896}")
    def kb(i):
        I(f"s_lshl_b32 s{sKB+i}, s{sT}, 7"); I(f"s_add_u32 s{sKB+i}, s{sKB+i}, s{sXrow}")
        I(f"s_lshl_b32 s{sQB+i}, s{sT}, 19"); I(f"s_add_u32 s{sQB+i}, s{sQB+i}, s{sQcol}")
        if i<6:
            I(f"s_add_u32 s{sT}, s{sT}, 1"); I(f"s_cmp_eq_u32 s{sT}, 7"); I(f"s_cselect_b32 s{sT}, 0, s{sT}")
    for i in range(7): kb(i)
    I(f"s_mul_i32 s{sX}, s{sB}, {0 if hot else 112}"); I(f"s_lshl_b32 s{sT2}, s{sRH}, 6"); I(f"s_add_u32 s{sX}, s{sX}, s{sT2}"); I(f"s_mul_i32 s{sX}, s{sX}, 896")
    I(f"s_mul_i32 s{sT2}, s{sRH}, {16*896}"); I(f"s_sub_u32 s{sX+2}, {64*896}, s{sT2}"); I(f"s_mov_b32 s{sX+3}, 0x20000")
    I(f"s_lshl_b32 s{sWQ}, s{sH}, 9"); I(f"s_sub_u32 s{sWQ+2}, {448*8192}, s{sWQ}"); I(f"s_mov_b32 s{sWQ+3}, 0x20000")
    I("s_waitcnt lgkmcnt(0)")
    I(f"s_add_u32 s{sX}, s4, s{sX}"); I(f"s_addc_u32 s{sX+1}, s5, 0")
    I(f"s_add_u32 s{sWQ}, s10, s{sWQ}"); I(f"s_addc_u32 s{sWQ+1}, s11, 0")
    def srd(d,src,offreg,size):
        if offreg is None:
            I(f"s_mov_b32 s{d}, s{src}"); I(f"s_mov_b32 s{d+1}, s{src+1}")
        else:
            I(f"s_add_u32 s{d}, s{src}, s{offreg}"); I(f"s_addc_u32 s{d+1}, s{src+1}, 0")
        I(f"s_mov_b32 s{d+2}, {size}"); I(f"s_mov_b32 s{d+3}, 0x20000")

    st=Stream(e); st.nodma=nodma
    st.release(*Rs,*Xs,*Qs)
    xp=[]
    for i in range(7):
        xp.append((f"x{i}",U(f"X{i}"),[([],0,f"buffer_load_dwordx4 v{vDx}, s[{sX}:{sX+3}], s{sKB+i} offen lds"),
                                     ([],None,f"buffer_load_dwordx4 v{vDx+1}, s[{sX}:{sX+3}], s{sKB+i} offen offset:1024 lds")]))
    qp=[]
    for i in range(14):
        for hf in range(2):
            idx=2*i+hf
            al=U(*Qs,"X7") if idx>=23 else U(*Rs,*Qs,"X7") if idx<12 else U(*Qs,"X7",*Rs)
            if i&1:
                pre=[f"s_add_u32 s{sOff}, s{sQB+(i>>1)}, {32*8192}"] if hf==0 else []
                so=sOff
            else: pre=[]; so=sQB+(i>>1)
            qp.append((f"q{i}{'AB'[hf]}",al,[(pre,0,f"buffer_load_dwordx4 v{vDq+2*hf}, s[{sWQ}:{sWQ+3}], s{so} offen lds"),
                                            ([],None,f"buffer_load_dwordx4 v{vDq+2*hf+1}, s[{sWQ}:{sWQ+3}], s{so} offen offset:1024 lds")]))
    order=[xp[0]]+qp[0:4]+[xp[1]]+qp[4:6]+[xp[2]]+qp[6:8]+[xp[3]]+qp[8:10]+[xp[4]]+qp[10:12]+[xp[5],xp[6]]+qp[12:]
    for p in order: st.add(*p)
    for ps in range(2):
        for i in range(4):
            for kt in range(4):
                idx=ps*16+i*4+kt
                al=U(*Xs) if idx>=24 else U(*Xs,*Rs)
                pre=[]
                if kt==0:
                    pre=[f"s_add_u32 s{sT}, s{sRD}, {i}", f"s_and_b32 s{sT}, s{sT}, 3", f"s_lshl_b32 s{sT}, s{sT}, 7", f"s_add_u32 s{sOff}, s{sT}, s{sKbase}"]
                    if ps: pre.append(f"s_add_u32 s{sOff}, s{sOff}, {64*512}")
                elif kt==2: pre=[f"s_add_u32 s{sOff}, s{sOff}, {32*512}"]
                j=2*(kt&1)
                st.add(f"k{ps}{i}{kt}",al,[(pre,0,f"buffer_load_dwordx4 v{vDk+j}, s[{sK}:{sK+3}], s{sOff} offen lds"),
                                           ([],None,f"buffer_load_dwordx4 v{vDk+j+1}, s[{sK}:{sK+3}], s{sOff} offen offset:1024 lds")])
    vl=Rs+Qs
    for i in range(16):
        for hf in range(2):
            idx=2*i+hf
            pre=[]
            if hf==0:
                if i==0: pre=[f"s_lshl_b32 s{sT2}, s{sRK}, 16", f"s_add_u32 s{sOff}, s{sT2}, s{sVcol}"]
                else: pre=[f"s_add_u32 s{sOff}, s{sOff}, {32*512}", f"s_and_b32 s{sOff}, s{sOff}, 0x3ffff"]
            st.add(f"v{i}{'AB'[hf]}",U(vl[(idx+1)%11]),[(pre,0,f"buffer_load_dwordx4 v{vDv+2*hf}, s[{sV}:{sV+3}], s{sOff} offen lds"),
                                                       ([],None,f"buffer_load_dwordx4 v{vDv+2*hf+1}, s[{sV}:{sV+3}], s{sOff} offen offset:1024 lds")])
    need=[["R0","R1","R2","R3"],["R4","R5","R6","R3h"],["X0","X1","X2","X3"],["X4","X5","X6","X7"]]
    for ks in range(8):
        pre=[f"s_add_u32 s{sT}, s{sRO}, {ks>>1}", f"s_and_b32 s{sT}, s{sT}, 3", f"s_mul_i32 s{sT}, s{sT}, {64*896}", f"s_add_u32 s{sOff}, s{sT}, s{sGam}"]
        if ks&1: pre=[f"s_add_u32 s{sOff}, s{sOff}, {32*896}"]
        ins=[]
        for i in range(7):
            ins.append((pre if i==0 else [], 0 if i==0 else (4096 if i==4 else None),
                        f"buffer_load_dwordx4 v{vDo+i}, s[{sWO}:{sWO+3}], s{sOff} offen"+(f" offset:{(i&3)*1024}" if i&3 else "")+" lds"))
        st.add(f"o{ks}",[(WOSLOT[ks&3],need[ks&3])],ins)

    st.emit(pro)
    stamp("issued")
    I(f"s_add_u32 s{sT}, s{pWS}, {NSLOT}"); I(f"s_addc_u32 s{sT+1}, s{pWS+1}, 0"); I(f"s_load_dword s{sOld}, s[{sT}:{sT+1}], 0")
    u=lambda i: f"v{T+8+i}"
    I(f"v_lshrrev_b32 {u(0)}, 4, v{vLane}"); I(f"v_and_b32 {u(1)}, 15, v{vLane}"); I(f"v_and_b32 {u(2)}, 3, v{vLane}")
    I(f"v_lshrrev_b32 {u(3)}, 2, v{vLane}")
    I(f"v_lshrrev_b32 {u(4)}, 1, {u(3)}"); I(f"v_and_b32 {u(4)}, 3, {u(4)}"); I(f"v_lshlrev_b32 {u(4)}, 5, {u(4)}")
    I(f"v_lshlrev_b32 {t(6)}, 7, {u(3)}"); I(f"v_lshl_add_u32 {t(6)}, {u(2)}, 3, {t(6)}"); I(f"v_add_u32 {t(6)}, s{sWB}, {t(6)}")
    for tt in range(4):
        I(f"v_xor_b32 {t(7)}, {tt<<5}, {u(4)}"); I(f"v_add_u32 v{vTr+tt}, {t(6)}, {t(7)}")
    I(f"v_lshlrev_b32 {t(6)}, 7, {u(1)}")
    I(f"v_lshrrev_b32 {t(7)}, 1, {u(1)}"); I(f"v_xor_b32 {t(7)}, {u(0)}, {t(7)}"); I(f"v_lshl_add_u32 v{vXb}, {t(7)}, 4, {t(6)}")
    I(f"v_xor_b32 v{vXb+2}, 64, v{vXb}")
    I(f"v_add_u32 v{vXb+1}, {2*WS}, v{vXb}"); I(f"v_add_u32 v{vXb+3}, {2*WS}, v{vXb+2}")
    I(f"v_add_u32 v{vKa}, s{sWB}, v{vXb}"); I(f"v_add_u32 v{vKa+1}, s{sWB}, v{vXb+2}")
    I(f"s_mul_i32 s{sG}, s{sB}, {0 if hot else 8}"); I(f"s_add_u32 s{sG}, s{sG}, s{sKVH}"); I(f"s_lshl_b32 s{sG}, s{sG}, 18")
    srd(sK,6,sG,262144); srd(sV,8,sG,262144)
    I(f"s_mul_i32 s{sG}, s{sH}, 229376"); srd(sWO,pWO,sG,229376)
    srd(sWS,pWS,None,WSUSED if not stamps else 268435456)
    srd(sOUT,pOUT,None,8*112*448*2); srd(sDBG,pDBG,None,256)
    I(f"s_add_u32 s{sKbase}, s{sW}, s{sRK}"); I(f"s_and_b32 s{sKbase}, s{sKbase}, 3"); I(f"s_lshl_b32 s{sKbase}, s{sKbase}, 16")
    I(f"s_add_u32 s{sVcol}, s{sW}, s{sRO}"); I(f"s_and_b32 s{sVcol}, s{sVcol}, 3"); I(f"s_lshl_b32 s{sVcol}, s{sVcol}, 7")
    I(f"s_and_b32 s{sGam}, s{sW}, 1"); I(f"s_lshl_b32 s{sGam}, s{sGam}, 1"); I(f"s_lshr_b32 s{sG}, s{sW}, 1"); I(f"s_add_u32 s{sGam}, s{sGam}, s{sG}"); I(f"s_mul_i32 s{sGam}, s{sGam}, {8*896}")
    I(f"s_mov_b32 s{sC}, 0x{f32(math.log2(math.e)/16.0):08x}")
    I(f"v_lshlrev_b32 {t(6)}, 9, {t(0)}")
    I(f"v_add_u32 v{vDv}, {t(6)}, {t(5)}")
    for n in range(1,4): I(f"v_add_u32 v{vDv+n}, {n*4096-(n&1)*1024}, v{vDv}")
    I(f"v_add_u32 v{vDk}, {t(6)}, {t(3)}"); I(f"v_add_u32 v{vDk+1}, {t(6)}, {t(4)}"); I(f"v_add_u32 v{vDk+1}, {4096-1024}, v{vDk+1}")
    I(f"v_add_u32 v{vDk+2}, 8192, v{vDk}"); I(f"v_add_u32 v{vDk+3}, 8192, v{vDk+1}")
    I(f"v_lshlrev_b32 v{vLinX}, 4, v{vLane}"); I(f"v_add_u32 v{vLinX+1}, {2*WS}, v{vLinX}")
    for i in range(7):
        f0=(i>>1)&3; f1=((i+1)>>1)&3; add=4096 if i>=4 else 0
        if f0==f1:
            I(f"v_xor_b32 v{vDo+i}, {(f0<<5)|add}, v{vLinX}")
        else:
            I(f"v_cmp_gt_u32 vcc, {56-8*i}, v{vLane}")
            I(f"v_mov_b32 {t(7)}, {(f0<<5)|add}"); I(f"v_mov_b32 v{vDo+i}, {(f1<<5)|add}")
            I(f"v_cndmask_b32 {t(7)}, v{vDo+i}, {t(7)}, vcc"); I(f"v_xor_b32 v{vDo+i}, {t(7)}, v{vLinX}")
    I(f"v_and_b32 {t(6)}, 7, {u(3)}"); I(f"v_mul_u32_u24 {t(6)}, 896, {t(6)}"); I(f"v_lshl_add_u32 {t(6)}, {u(2)}, 3, {t(6)}")
    I(f"v_lshrrev_b32 {t(7)}, 1, {u(0)}"); I(f"v_mul_u32_u24 {t(7)}, {2*WS}, {t(7)}"); I(f"v_add_u32 {t(6)}, {t(6)}, {t(7)}")
    I(f"s_mul_i32 s{sG}, s{sW}, {7*32}")
    for nt in range(7):
        I(f"v_xor_b32 {t(7)}, s{sG}, {u(4)}"); I(f"v_add_u32 v{vWo+nt}, {t(6)}, {t(7)}")
        if nt<6: I(f"s_add_u32 s{sG}, s{sG}, 32")
    I(f"v_add_u32 v{vLinQ}, {QO}, v{vLinX}"); I(f"v_add_u32 v{vLinQ+1}, {QO+2*WS}, v{vLinX}")
    I(f"v_add_u32 v{vPw}, s{sWB}, v{vLinX}")
    I(f"v_lshrrev_b32 {t(6)}, 1, {u(0)}"); I(f"v_lshl_add_u32 {t(6)}, {t(6)}, 4, {u(1)}"); I(f"v_lshlrev_b32 {t(6)}, 4, {t(6)}")
    I(f"v_and_b32 {t(7)}, 1, {u(0)}"); I(f"v_lshl_add_u32 {t(6)}, {t(7)}, 3, {t(6)}"); I(f"v_add_u32 {t(6)}, s{sWB}, {t(6)}"); I(f"v_add_u32 v{vQw}, {QO}, {t(6)}")
    I(f"v_lshlrev_b32 {t(7)}, 1, {t(7)}"); I(f"v_lshrrev_b32 {t(6)}, 1, {u(0)}"); I(f"v_add_u32 {t(6)}, {t(6)}, {t(7)}"); I(f"v_lshl_add_u32 {t(6)}, {t(6)}, 4, {u(1)}"); I(f"v_lshlrev_b32 {t(6)}, 4, {t(6)}")
    I(f"s_lshl_b32 s{sG}, s{sW}, 2"); I(f"s_add_u32 s{sG}, s{sG}, {MO}"); I(f"v_add_u32 v{vMw}, s{sG}, {t(6)}")
    I(f"v_lshlrev_b32 v{vMr}, 4, {u(1)}"); I(f"v_add_u32 v{vMr}, {MO}, v{vMr}")
    I(f"v_mul_u32_u24 v6, 896, {u(1)}"); I(f"v_lshl_add_u32 v6, {u(0)}, 3, v6"); I(f"v_lshlrev_b32 v7, 3, {u(1)}"); I("v_mov_b32 v8, 0")
    I(f"s_lshl_b32 s{sG}, s{sB}, 1"); I(f"s_add_u32 s{sG}, s{sG}, s{sRH}")
    st.emit(pro2)
    I("s_waitcnt lgkmcnt(0)")
    I(f"s_or_b32 s{sT}, s2, s{sW}"); I(f"s_cmp_lg_u32 s{sT}, 0"); I("s_cbranch_scc1 L_nonon")
    I(f"s_mul_i32 s{sOld}, s{sOld}, 1664525"); I(f"s_add_u32 s{sOld}, s{sOld}, 1013904223")
    I(f"v_mov_b32 v{vNon}, s{sOld}"); I(f"v_mov_b32 v{vNon+1}, 1"); I(f"s_mov_b32 s{sT}, {NSLOT}")
    I("s_mov_b64 exec, 1")
    I(f"buffer_store_dwordx2 v[{vNon}:{vNon+1}], v8, s[{sDBG}:{sDBG+3}], 0 offen sc1")
    I(f"buffer_store_dword v{vNon}, v8, s[{sWS}:{sWS+3}], s{sT} offen")
    I("s_mov_b64 exec, -1")
    L.append("L_nonon:")

    def barrier(): I("s_barrier")
    def run_step(mf, reads, dmagaps, rgaps=None):
        if rgaps is None: rgaps=list(range(len(reads)))
        for gi,m in enumerate(mf):
            I(m)
            for ri,rg in enumerate(rgaps):
                if rg==gi: e.lgi(*reads[ri])
            for _ in range(dmagaps.count(gi)): st.emit(1)
    def tr_reads(tagA,tagB,base,rt):
        out=[]
        for tt in range(4):
            out.append((f"ds_read_b64_tr_b16 v[{base+4*tt}:{base+4*tt+1}], v{vTr+tt} offset:{st.off(tagA)}",rt))
            out.append((f"ds_read_b64_tr_b16 v[{base+4*tt+2}:{base+4*tt+3}], v{vTr+tt} offset:{st.off(tagB)}",rt))
        return out
    def order_reads(a,b):
        k=len(a)//4
        return a[:k]+b+a[k:]
    DG=[1,5,9,13]
    DG8=[1,3,5,7,9,11,13,15]
    RG=[0,0,2,3,4,6,7,8,10,11,12,12]

    e.C("==== P1")
    st.ensure(["x0","x1","q0A","q0B"])
    e.wait(vm=["x0","x1","q0A","q0B"]); barrier()
    stamp("xready")
    def p1_reads(i):
        base=FR+32*(i&1)
        a=tr_reads(f"q{i}A",f"q{i}B",base,f"f1_{i}")
        b=[(f"ds_read_b128 v[{base+16+4*qt}:{base+19+4*qt}], v{vXb+2*(i&1)+(qt>>1)} offset:{(qt&1)*WS+(i>>1)*2048}",f"f1_{i}") for qt in range(4)]
        return order_reads(a,b)
    for x in p1_reads(0): e.lgi(*x)
    for i in range(14):
        base=FR+32*(i&1)
        nxt=[f"q{i+1}A",f"q{i+1}B"] if i<13 else []
        if i==3: nxt+=["x2","x3"]
        if i==7: nxt+=["x4","x5","x6"]
        st.ensure(nxt)
        e.wait(vm=nxt,lg=[f"f1_{i}"])
        if i in (3,7): barrier()
        st.release_tag(f"q{i}A"); st.release_tag(f"q{i}B")
        mf=[mfma(ACC+4*(4*tt+qt),base+4*tt,base+16+4*qt,i==0) for tt in range(4) for qt in range(4)]
        run_step(mf,p1_reads(i+1) if i<13 else [],DG8[:ramp] if i<6 and ramp>4 else DG,RG if i<13 else [])
    stamp("p1end")
    for un in Qs: assert un in st.free, un
    for un in Qs: st.free.discard(un)
    I("s_nop 7")
    for tt in range(4):
        for qt in range(4):
            d=ACC+4*(4*tt+qt); tmp=FR+2*((4*tt+qt)%8)
            I(f"v_cvt_pk_bf16_f32 v{tmp}, v{d}, v{d+1}"); I(f"v_cvt_pk_bf16_f32 v{tmp+1}, v{d+2}, v{d+3}")
            e.lgi(f"ds_write_b64 v{vQw}, v[{tmp}:{tmp+1}] offset:{((tt>>1)*4+qt)*1024+(tt&1)*512}","qw")
    e.wait(lgall=True); barrier()
    stamp("qready")
    st.release(*[f"X{i}" for i in range(7)])
    e.C("==== P2")
    def p2_reads(s):
        ps,i,par=s>>3,(s>>1)&3,s&1
        base=FR+32*(s&1)
        a=[(f"ds_read_b128 v[{base+4*kt}:{base+4*kt+3}], v{vKa+par} offset:{st.off(f'k{ps}{i}{kt}')}",f"f2_{s}") for kt in range(4)]
        b=[]
        if ps==0:
            for qt in range(4):
                ar=16*s+4*qt
                b.append((f"ds_read_b128 a[{ar}:{ar+3}], v{vLinQ+(i>>1)} offset:{(i&1)*WS+(par*4+qt)*1024}",f"f2_{s}"))
        return order_reads(a,b)
    def ktags(s): return [f"k{s>>3}{(s>>1)&3}{kt}" for kt in range(4)]
    st.ensure(ktags(0))
    e.wait(vm=ktags(0))
    for x in p2_reads(0): e.lgi(*x)
    st.emit(2)
    for s in range(16):
        base=FR+32*(s&1); ps=s>>3
        nx=ktags(s+1) if s<15 else []
        st.ensure(nx)
        e.wait(vm=nx,lg=[f"f2_{s}"])
        if s&1:
            for tg in ktags(s): st.release_tag(tg)
        mf=[mfma(ACC+64*ps+4*(4*kt+qt),base+4*kt,16*(s&7)+4*qt,(s&7)==0,rb='a') for kt in range(4) for qt in range(4)]
        rd=p2_reads(s+1) if s<15 else []
        run_step(mf,rd,DG8[:6] if s<4 else DG,RG[1:1+len(rd)])
    for un in Xs: assert un in st.free, un
    for un in Xs: st.free.discard(un)
    stamp("p2end")
    e.C("==== softmax")
    def S(ps,kt,qt,r): return ACC+64*ps+4*(4*kt+qt)+r
    allv=lambda qt:[S(ps,kt,qt,r) for ps in range(2) for kt in range(4) for r in range(4)]
    for qt in range(4):
        vals=allv(qt); I(f"v_max_f32 v{vNm+qt}, v{vals[0]}, v{vals[1]}")
    for k in range(1,16):
        for qt in range(4):
            vals=allv(qt); I(f"v_max3_f32 v{vNm+qt}, v{vals[2*k]}, v{vals[2*k+1]}, v{vNm+qt}")
    def xreduce(b,op):
        I("s_nop 1")
        I(f"v_permlane32_swap_b32 v{b}, v{b+1}"); I(f"v_permlane32_swap_b32 v{b+2}, v{b+3}")
        I("s_nop 1")
        I(f"{op} v{b}, v{b}, v{b+1}"); I(f"{op} v{b+2}, v{b+2}, v{b+3}")
        I("s_nop 1")
        I(f"v_permlane16_swap_b32 v{b}, v{b+2}")
        I("s_nop 1")
        I(f"{op} v{b}, v{b}, v{b+2}")
    xreduce(vNm,"v_max_f32")
    e.lgi(f"ds_write_b32 v{vMw}, v{vNm}","mw")
    e.wait(lgall=True)
    stamp("maxw")
    barrier()
    st.release(*Qs)
    for qt in range(4): e.lgi(f"ds_read_b128 v[{FR+4*qt}:{FR+4*qt+3}], v{vMr} offset:{qt*256}","mr")
    e.wait(lgall=True)
    stamp("maxr")
    for qt in range(4):
        b=FR+4*qt; I(f"v_max3_f32 v{b}, v{b}, v{b+1}, v{b+2}")
    for qt in range(4):
        b=FR+4*qt; I(f"v_max_f32 v{b}, v{b}, v{b+3}")
    for qt in range(4): I(f"v_mul_f32 v{vNm+qt}, s{sC}, v{FR+4*qt}")
    for m in range(4):
        ps,kp=m>>1,m&1
        for qt in range(4):
            vals=[S(ps,2*kp+kk,qt,r) for kk in range(2) for r in range(4)]
            for v in vals: I(f"v_fma_f32 v{v}, v{v}, s{sC}, -v{vNm+qt}")
            for v in vals: I(f"v_exp_f32 v{v}, v{v}")
            tmp=FR+4*((4*m+qt)%8)
            for j in range(4): I(f"v_cvt_pk_bf16_f32 v{tmp+j}, v{vals[2*j]}, v{vals[2*j+1]}")
            e.lgi(f"ds_write_b128 v{vPw}, v[{tmp}:{tmp+3}] offset:{XO+(m*4+qt)*1024}","pw")
            I(f"v_add_f32 v{vals[0]}, v{vals[0]}, v{vals[1]}"); I(f"v_add_f32 v{vals[2]}, v{vals[2]}, v{vals[3]}")
            I(f"v_add_f32 v{vals[4]}, v{vals[4]}, v{vals[5]}"); I(f"v_add_f32 v{vals[6]}, v{vals[6]}, v{vals[7]}")
            I(f"v_add_f32 v{vals[0]}, v{vals[0]}, v{vals[2]}"); I(f"v_add_f32 v{vals[4]}, v{vals[4]}, v{vals[6]}")
            if m==0: I(f"v_add_f32 v{vSum+qt}, v{vals[0]}, v{vals[4]}")
            else:
                I(f"v_add_f32 v{vals[0]}, v{vals[0]}, v{vals[4]}"); I(f"v_add_f32 v{vSum+qt}, v{vSum+qt}, v{vals[0]}")
            st.emit(1)
    xreduce(vSum,"v_add_f32")
    e.lgi(f"ds_write_b32 v{vMw}, v{vSum} offset:1024","sw")
    e.wait(lgall=True)
    stamp("pw")
    barrier()
    stamp("pready")
    e.C("==== P3")
    def p3_reads(i):
        base=FR+32*(i&1); rg=i>>2
        a=tr_reads(f"v{i}A",f"v{i}B",base,f"f3_{i}")
        b=[(f"ds_read_b128 v[{base+16+4*qt}:{base+19+4*qt}], v{vLinX+(rg>>1)} offset:{(rg&1)*WS+((i&3)*4+qt)*1024}",f"f3_{i}") for qt in range(4)]
        return order_reads(a,b)
    e.wait(vm=["v0A","v0B"])
    for x in p3_reads(0): e.lgi(*x)
    for i in range(16):
        base=FR+32*(i&1)
        nx=[f"v{i+1}A",f"v{i+1}B"] if i<15 else []
        st.ensure(nx)
        e.wait(vm=nx,lg=[f"f3_{i}"])
        st.release_tag(f"v{i}A"); st.release_tag(f"v{i}B")
        if "o0" in st.loc and "R3h" not in st.free and "o1" not in st.loc: st.release("R3h")
        mf=[mfma(ACC+4*(4*tt+qt),base+4*tt,base+16+4*qt,i==0) for tt in range(4) for qt in range(4)]
        if i<15: run_step(mf,p3_reads(i+1),DG,RG)
        else:
            rd=[(f"ds_read_b128 v[{FR+4*qt}:{FR+4*qt+3}], v{vMr} offset:{1024+qt*256}","sr") for qt in range(4)]
            run_step(mf,rd,DG,[0,2,3,4])
    for un in Qs: assert un in st.free, un
    for un in Qs: st.free.discard(un)
    if "R3h" not in st.free and "o1" not in st.loc: st.release("R3h")
    stamp("p3end")
    e.wait(lg=["sr"])
    for qt in range(4):
        b=FR+4*qt
        I(f"v_add_f32 v{b}, v{b}, v{b+1}"); I(f"v_add_f32 v{b+2}, v{b+2}, v{b+3}")
    for qt in range(4):
        b=FR+4*qt; I(f"v_add_f32 v{b}, v{b}, v{b+2}")
    for qt in range(4): I(f"v_rcp_f32 v{vSum+qt}, v{FR+4*qt}")
    I("s_nop 0")
    for m in range(2):
        for qt in range(4):
            vals=[ACC+4*(4*(2*m+kk)+qt)+r for kk in range(2) for r in range(4)]
            for v in vals: I(f"v_mul_f32 v{v}, v{v}, v{vSum+qt}")
            tmp=FR+32+4*((4*m+qt)%8)
            for j in range(4): I(f"v_cvt_pk_bf16_f32 v{tmp+j}, v{vals[2*j]}, v{vals[2*j+1]}")
            e.lgi(f"ds_write_b128 v{vPw}, v[{tmp}:{tmp+3}] offset:{QO+(m*4+qt)*1024}","ow")
            st.emit(1)
    st.ensure(["o0","o1"])
    e.wait(vm=["o0"],lgall=True); barrier()
    st.release(*Xs)
    stamp("oready")
    e.C("==== P4")
    def p4_reads(ks):
        base=FR+28*(ks&1); rg=ks>>1; so=st.off(f"o{ks}")
        a=[]
        for nt in range(7):
            a.append((f"ds_read_b64_tr_b16 v[{base+4*nt}:{base+4*nt+1}], v{vWo+nt} offset:{so}",f"f4_{ks}"))
            a.append((f"ds_read_b64_tr_b16 v[{base+4*nt+2}:{base+4*nt+3}], v{vWo+nt} offset:{so+WS}",f"f4_{ks}"))
        b=[(f"ds_read_b128 a[{16*ks+4*qt}:{16*ks+4*qt+3}], v{vLinQ+(rg>>1)} offset:{(rg&1)*WS+((ks&1)*4+qt)*1024}",f"f4_{ks}") for qt in range(4)]
        return a[:2]+b+a[2:]
    for x in p4_reads(0): e.lgi(*x)
    st.emit(7)
    for ks in range(8):
        base=FR+28*(ks&1)
        nx=[f"o{ks+1}"] if ks<7 else []
        st.ensure(nx)
        e.wait(vm=nx,lg=[f"f4_{ks}"])
        if ks<7: barrier()
        if ks==6: e.vmi(f"buffer_load_dwordx2 v[{vNon}:{vNon+1}], v8, s[{sDBG}:{sDBG+3}], 0 offen sc1","non")
        st.release_tag(f"o{ks}")
        mf=[mfma(ACC+4*(4*nt+qt),base+4*nt,16*ks+4*qt,ks==0,rb='a') for nt in range(7) for qt in range(4)]
        rd=p4_reads(ks+1) if ks<7 else []
        dg=[1,3,5,7,9,11,13,15,17,19,21,23,25,27] if ks==0 else [1,5,9,13,17,21,25]
        rgs=[g for g in range(28) if g not in [1,5,9,13,17,21,25]][:len(rd)]
        run_step(mf,rd,dg,rgs)
    assert not st.q
    stamp("p4end")
    I(f"s_mul_i32 s{sT}, s{sG}, 56")
    I(f"s_mul_i32 s{sT2}, s{sW}, 14"); I(f"s_add_u32 s{sT}, s{sT}, s{sT2}")
    I(f"s_lshl_b32 s{sOff}, s{sT}, 4"); I(f"s_add_u32 s{sOff}, s{sOff}, s{sH}"); I(f"s_lshl_b32 s{sOff}, s{sOff}, 10")
    I(f"s_add_u32 s{sT}, s{sT}, s{sH}"); I(f"s_lshl_b32 s{sKbase}, s{sT}, 14")
    I("s_nop 1")
    for nt in range(7):
        for pr in range(2):
            d=ACC+4*(4*nt+2*pr); tmp=FR+4*((2*nt+pr)%14)
            for j in range(4): I(f"v_cvt_pk_bf16_f32 v{tmp+j}, v{d+2*j}, v{d+2*j+1}")
            e.vmi(f"buffer_store_dwordx4 v[{tmp}:{tmp+3}], v{vLinX}, s[{sWS}:{sWS+3}], s{sOff} offen{sc}","st")
            I(f"s_add_u32 s{sOff}, s{sOff}, 16384")
    I(f"s_lshl_b32 s{sT}, s{sG}, 2"); I(f"s_add_u32 s{sT}, s{sT}, s{sW}"); I(f"s_lshl_b32 s{sT}, s{sT}, 7"); I(f"s_add_u32 s{sVcol}, s{sT}, {FLG}")
    I(f"s_lshl_b32 s{sT}, s{sH}, 3"); I(f"s_add_u32 s{sOff}, s{sVcol}, s{sT}")
    I(f"s_mul_i32 s{sGam}, s{sB}, 112"); I(f"s_lshl_b32 s{sT}, s{sRH}, 6"); I(f"s_add_u32 s{sGam}, s{sGam}, s{sT}"); I(f"s_lshl_b32 s{sT}, s{sHH}, 5"); I(f"s_add_u32 s{sGam}, s{sGam}, s{sT}")
    I(f"s_mul_i32 s{sGam}, s{sGam}, 896"); I(f"s_mul_i32 s{sT}, s{sW}, 224"); I(f"s_add_u32 s{sGam}, s{sGam}, s{sT}"); I(f"s_lshl_b32 s{sT}, s{sKVH}, 5"); I(f"s_add_u32 s{sGam}, s{sGam}, s{sT}")
    I(f"s_mov_b32 s{sQcol}, 100000")
    L.append("L_nonce:")
    I("s_waitcnt vmcnt(0)")
    I(f"v_readfirstlane_b32 s{sT}, v{vNon+1}")
    I(f"s_cmp_eq_u32 s{sT}, 1"); I("s_cbranch_scc1 L_havenonce")
    I(f"s_sub_u32 s{sQcol}, s{sQcol}, 1"); I(f"s_cmp_eq_u32 s{sQcol}, 0"); I("s_cbranch_scc1 L_end")
    I(f"buffer_load_dwordx2 v[{vNon}:{vNon+1}], v8, s[{sDBG}:{sDBG+3}], 0 offen sc1")
    I("s_branch L_nonce")
    L.append("L_havenonce:")
    I(f"v_not_b32 v{vNon+1}, v{vNon}")
    I("s_mov_b64 exec, 1")
    I(f"buffer_store_dwordx2 v[{vNon}:{vNon+1}], v8, s[{sWS}:{sWS+3}], s{sOff} offen sc1")
    I("s_mov_b64 exec, -1")
    stamp("flag")
    I(f"s_cmp_ge_u32 s{sH}, 14"); I("s_cbranch_scc1 L_fin")
    L.append("L_poll:")
    I(f"buffer_load_dwordx2 v[{FR}:{FR+1}], v7, s[{sWS}:{sWS+3}], s{sVcol} offen sc1")
    I("s_waitcnt vmcnt(0)")
    I(f"v_cmp_eq_u64 vcc, v[{FR}:{FR+1}], v[{vNon}:{vNon+1}]")
    I("s_nop 1")
    I("s_cmp_eq_u64 vcc, exec"); I("s_cbranch_scc1 L_go")
    I(f"s_sub_u32 s{sQcol}, s{sQcol}, 1"); I(f"s_cmp_eq_u32 s{sQcol}, 0"); I("s_cbranch_scc1 L_end")
    if sleep: I(f"s_sleep {sleep}")
    I("s_branch L_poll")
    L.append("L_go:")
    stamp("go")
    for h in range(16):
        I(f"buffer_load_dwordx4 v[{ACC+4*h}:{ACC+3+4*h}], v{vLinX}, s[{sWS}:{sWS+3}], s{sKbase} offen"+(f" offset:{(h&3)*1024}" if h&3 else "")+sc)
        if (h&3)==3 and h<15: I(f"s_add_u32 s{sKbase}, s{sKbase}, 4096")
    I(f"s_mov_b32 s{sT}, 0xffff0000")
    for h in range(16):
        I(f"s_waitcnt vmcnt({15-h})")
        for j in range(4):
            r=ACC+4*h+j
            if h==0:
                I(f"v_lshlrev_b32 v{FR+2*j}, 16, v{r}"); I(f"v_and_b32 v{FR+1+2*j}, s{sT}, v{r}")
            else:
                I(f"v_lshlrev_b32 v{FR+8}, 16, v{r}"); I(f"v_and_b32 v{FR+9}, s{sT}, v{r}")
                I(f"v_add_f32 v{FR+2*j}, v{FR+2*j}, v{FR+8}"); I(f"v_add_f32 v{FR+1+2*j}, v{FR+1+2*j}, v{FR+9}")
    for j in range(4): I(f"v_cvt_pk_bf16_f32 v{FR+12+j}, v{FR+2*j}, v{FR+1+2*j}")
    I(f"buffer_store_dwordx2 v[{FR+12}:{FR+13}], v6, s[{sOUT}:{sOUT+3}], s{sGam} offen")
    I(f"s_and_b32 s{sT}, s{sRH}, s{sHH}"); I(f"s_cmp_lg_u32 s{sT}, 0"); I("s_cbranch_scc1 L_fin")
    I(f"s_add_u32 s{sGam}, s{sGam}, {16*896}")
    I(f"buffer_store_dwordx2 v[{FR+14}:{FR+15}], v6, s[{sOUT}:{sOUT+3}], s{sGam} offen")
    L.append("L_fin:")
    if stamps:
        I("s_waitcnt vmcnt(0)"); stamp("end")
        I(f"s_lshl_b32 s{sT}, s2, 2"); I(f"s_add_u32 s{sT}, s{sT}, s{sW}"); I(f"s_lshl_b32 s{sT}, s{sT}, 9"); I(f"s_add_u32 s{sT}, s{sT}, {STO}")
        I(f"v_lshlrev_b32 v9, 2, v{vLane}")
        I(f"buffer_store_dword v{vS0}, v9, s[{sWS}:{sWS+3}], s{sT} offen"); I(f"buffer_store_dword v{vS1}, v9, s[{sWS}:{sWS+3}], s{sT} offen offset:256")
    L.append("L_end:"); I("s_endpgm")
    kl=[(NAME,384,256)]
    if amp:
        a0,a1=[int(x) for x in str(amp).split("_")]
        kl.append(("amp_kernel",8,8))
        L.append(".globl amp_kernel\n.p2align 8\n.type amp_kernel,@function\namp_kernel:")
        I("s_cmp_ge_u32 s2, 1"); I("s_cbranch_scc1 L_amp_end")
        I("s_memrealtime s[30:31]")
        I("s_load_dwordx2 s[6:7], s[0:1], 56"); I("s_waitcnt lgkmcnt(0)")
        I(f"s_add_u32 s6, s6, {STO+100*4*512+256}"); I("s_addc_u32 s7, s7, 0")
        I(f"s_load_dword s8, s[6:7], {4*a0}"); I(f"s_load_dword s9, s[6:7], {4*min(a1,63)}"); I("s_memrealtime s[10:11]"); I("s_waitcnt lgkmcnt(0)")
        if a1==99: I("s_mov_b32 s9, s30")
        I("s_sub_u32 s8, s9, s8"); I("s_min_u32 s8, s8, 10000"); I("s_mul_i32 s8, s8, 10")
        L.append("L_amp_loop:")
        I("s_memrealtime s[12:13]"); I("s_waitcnt lgkmcnt(0)"); I("s_sub_u32 s14, s12, s10"); I("s_cmp_lt_u32 s14, s8"); I("s_cbranch_scc1 L_amp_loop")
        L.append("L_amp_end:"); I("s_endpgm")
    L.append('.section .rodata,"a"')
    for nm,nv,ao in kl:
        L.append(f".p2align 6\n.amdhsa_kernel {nm}\n  .amdhsa_next_free_vgpr {nv}\n  .amdhsa_next_free_sgpr 102\n  .amdhsa_accum_offset {ao}\n  .amdhsa_group_segment_fixed_size 0\n  .amdhsa_kernarg_size 64\n  .amdhsa_user_sgpr_count 2\n  .amdhsa_user_sgpr_kernarg_segment_ptr 1\n  .amdhsa_system_sgpr_workgroup_id_x 1\n.end_amdhsa_kernel")
    if stamps: open("stampnames.txt","w").write(" ".join(names))
    return "\n".join(L)+"\n"

if __name__=="__main__":
    kw={}
    for a in sys.argv[2:]:
        k,v=a.split("=")
        if v.isdigit(): v=int(v)
        kw[k]=v
    open(sys.argv[1],"w").write(gen(**kw))
```
